```python
import torch

def _softmax(x, axis=-1):
    return torch.softmax(x, dim=axis)
def _gelu(x):
    return torch.nn.functional.gelu(x, approximate="tanh")
def _silu(x):
    return torch.nn.functional.silu(x)
def _sigmoid(x):
    return torch.sigmoid(x)
def _layernorm(x, axis=-1, eps=1e-5):
    m = x.mean(dim=axis, keepdim=True)
    v = x.var(dim=axis, keepdim=True, unbiased=False)
    return (x - m) / torch.sqrt(v + eps)
def _scatter_add(tgt, idx, src, axis=0):
    return tgt.clone().index_add_(axis, idx, src)
def _segment_sum(src, seg, n):
    out = torch.zeros((n,) + src.shape[1:], dtype=src.dtype)
    return out.index_add_(0, seg, src)
def _pad(x, pw):
    flat = tuple(v for pair in reversed(pw) for v in pair)
    return torch.nn.functional.pad(x, flat)

kernel_name = 'gated_mix__mha_block_cached__gqa_block_cached__decode'

def setup_inputs():

    _w = (lambda a: (lambda t: t.to(torch.bfloat16) if t.is_floating_point() else t)(torch.as_tensor(a)))
    def _A_setup():
        B, Sq, D = 8, 1, 1024
        H, Sk, Dh = 32, 4096, 128
        return {
            "x": _w((lambda *s: torch.randn(*s, dtype=torch.bfloat16) * 0.05)(B, Sq, D)),
            "k_cache": _w((lambda *s: torch.randn(*s, dtype=torch.bfloat16) * 6.4)(B, H, Sk, Dh)),
            "v_cache": _w((lambda *s: torch.randn(*s, dtype=torch.bfloat16) * 0.05)(B, H, Sk, Dh)),
            "wq": _w((lambda *s: torch.randn(*s, dtype=torch.bfloat16) * 6.4)(D, H * Dh) * (D ** -0.5)),
            "wo": _w((lambda *s: torch.randn(*s, dtype=torch.bfloat16) * 0.05)(H * Dh, D) * ((H * Dh) ** -0.5)),
        }
    _A_in = _A_setup()

    def _B_setup():
        B, Sq, D = 8, 1, 1024
        Hq, Hkv, Sk, Dh = 32, 4, 4096, 128
        assert Hq % Hkv == 0, (Hq, Hkv)
        return {
            "x": _w((lambda *s: torch.randn(*s, dtype=torch.bfloat16) * 0.05)(B, Sq, D)),
            "k_cache": _w((lambda *s: torch.randn(*s, dtype=torch.bfloat16) * 6.4)(B, Hkv, Sk, Dh)),
            "v_cache": _w((lambda *s: torch.randn(*s, dtype=torch.bfloat16) * 0.05)(B, Hkv, Sk, Dh)),
            "wq": _w((lambda *s: torch.randn(*s, dtype=torch.bfloat16) * 6.4)(D, Hq * Dh) * (D ** -0.5)),
            "wo": _w((lambda *s: torch.randn(*s, dtype=torch.bfloat16) * 0.05)(Hq * Dh, D) * ((Hq * Dh) ** -0.5)),
        }
    _B_in = _B_setup()

    return {
        "A_x": _A_in["x"],
        "A_k_cache": _A_in["k_cache"],
        "A_v_cache": _A_in["v_cache"],
        "A_wq": _A_in["wq"],
        "A_wo": _A_in["wo"],
        "B_x": _B_in["x"],
        "B_k_cache": _B_in["k_cache"],
        "B_v_cache": _B_in["v_cache"],
        "B_wq": _B_in["wq"],
        "B_wo": _B_in["wo"],
        "gate_w": _w((lambda *s: torch.randn(*s, dtype=torch.bfloat16) * 0.05)(1024) * 16.0),
    }

def reference(A_x, A_k_cache, A_v_cache, A_wq, A_wo, B_x, B_k_cache, B_v_cache, B_wq, B_wo, gate_w):
    def _A_ref(x, k_cache, v_cache, wq, wo):
        B, Sq, D = x.shape
        H, Dh = 32, 128
        q = (lambda x, *d: x.permute(*d))((x @ wq).reshape(B, Sq, H, Dh), 0, 2, 1, 3)
        scores = torch.einsum("bhqd,bhkd->bhqk", q, k_cache) * (Dh ** -0.5)
        p = _softmax(scores, axis=-1)
        o = torch.einsum("bhqk,bhkd->bhqd", p, v_cache)
        return (lambda x, *d: x.permute(*d))(o, 0, 2, 1, 3).reshape(B, Sq, H * Dh) @ wo

    def _B_ref(x, k_cache, v_cache, wq, wo):
        B, Sq, D = x.shape
        Hq, Dh = 32, 128
        Hkv = k_cache.shape[1]
        rep = Hq // Hkv
        q = (lambda x, *d: x.permute(*d))((x @ wq).reshape(B, Sq, Hq, Dh), 0, 2, 1, 3)
        k = (lambda x, n, axis: torch.repeat_interleave(x, n, dim=axis))(k_cache, rep, axis=1)
        v = (lambda x, n, axis: torch.repeat_interleave(x, n, dim=axis))(v_cache, rep, axis=1)
        scores = torch.einsum("bhqd,bhkd->bhqk", q, k) * (Dh ** -0.5)
        p = _softmax(scores, axis=-1)
        o = torch.einsum("bhqk,bhkd->bhqd", p, v)
        return (lambda x, *d: x.permute(*d))(o, 0, 2, 1, 3).reshape(B, Sq, Hq * Dh) @ wo

    x = A_x
    g = _sigmoid((x * gate_w).sum(-1, keepdims=True))
    a = _A_ref(x, A_k_cache, A_v_cache, A_wq, A_wo)
    b = _B_ref(x, B_k_cache, B_v_cache, B_wq, B_wo)
    return g * a + (1 - g) * b
```

```python
import sys
NAME = "gated_mix__mha_block_cached__gqa_block_cached__decode"
opts = dict(TS=0, SPIN=400000, NT="nt", PREK=1)
for a in sys.argv[2:]:
    k, v = a.split("="); opts[k] = int(v) if v.lstrip("-").isdigit() else v
TS = opts["TS"]; NT = opts["NT"]
L = []
def o(s): L.append("    " + s)
def lab(s): L.append(s + ":")
def c(s): L.append("    ; " + s)
SAK, SAV, SBK, SBV, SWQ, SWO, SX, SWS, SDBG, SOUT, SGW = 4, 8, 12, 16, 20, 24, 28, 32, 64, 68, 72
sH, sB, sW = 76, 77, 78
sT0, sT1, sT2, sT3 = 79, 80, 81, 82
sSEL0, sSEL1, sSCALE, sLOG2E, sOFF, sOFF2, sCNT, sSPIN = 83, 84, 85, 86, 87, 88, 89, 90
sTS = 92
def srd(r): return f"s[{r}:{r+3}]"
vLANE, vG, vC, vOK, vOV = 1, 2, 3, 4, 5
vT = list(range(6, 16))
vM, vL, vAL, vAL1 = 16, 17, 18, 19
S0, P0, Q0, ACC, VT, KB, VB, XT = 20, 28, 32, 48, 80, 96, 128, 160
def vr(b, n): return f"v[{b}:{b+n-1}]"
BML = 0; ACOMB = 512; AML = ACOMB + 4096
B2D = 4096 + 64; QS = ACOMB + 2 * B2D; GATE = QS + 2304
QRED = BCOMB = ORED = 11264; LDS_BYTES = QRED + 33792
assert GATE + 64 <= QRED
QP, BPO, BPML, OI, PI, TSO = 0, 0x100000, 0x200000, 0x210000, 0x300000, 0x400000
WS_BYTES = 0x410000
OOB = 0x7ffffff0
nstamp = [0]
def stamp():
    if not TS: return
    i = nstamp[0]; nstamp[0] += 1
    assert i < 10
    o("s_memrealtime s[2:3]"); o("s_waitcnt lgkmcnt(0)"); o(f"s_mov_b32 s{sTS+i}, s2")
def mksrd(r, ptr, nbytes, offreg=None):
    if offreg is None:
        o(f"s_mov_b32 s{r}, s{ptr}"); o(f"s_and_b32 s{r+1}, s{ptr+1}, 0xffff")
    else:
        o(f"s_add_u32 s{r}, s{ptr}, s{offreg}"); o(f"s_addc_u32 s{r+1}, s{ptr+1}, 0"); o(f"s_and_b32 s{r+1}, s{r+1}, 0xffff")
    o(f"s_mov_b32 s{r+2}, {hex(nbytes)}"); o(f"s_mov_b32 s{r+3}, 0x00020000")
def loadK(sr, dst=KB):
    for t in range(2):
        for j in range(4):
            o(f"buffer_load_dwordx4 {vr(dst+t*16+j*4,4)}, v{vOK}, {srd(sr)}, s{sOFF if t==0 else sOFF2} offen offset:{j*64} {NT}")
def loadV(sr, dst=VB):
    for i in range(8):
        o(f"buffer_load_dwordx4 {vr(dst+i*4,4)}, v{vOV}, {srd(sr)}, s{sOFF if i<4 else sOFF2} offen offset:{(i&3)*1024} {NT}")
def pv(src, pb, first=False):
    def perms(e):
        w_, hb = e >> 1, e & 1
        for u in range(4):
            o(f"v_perm_b32 v{VT+(e&3)*4+u}, v{src+(2*u+1)*4+w_}, v{src+(2*u)*4+w_}, s{sSEL1 if hb else sSEL0}")
    perms(0)
    for e in range(8):
        if e + 1 < 8: perms(e + 1)
        else: o("s_nop 1")
        cc = "0" if first else vr(ACC+e*4, 4)
        o(f"v_mfma_f32_16x16x32_bf16 {vr(ACC+e*4,4)}, {vr(VT+(e&3)*4,4)}, {vr(pb,4)}, {cc}")
def xmax(v, t, op="v_max_f32"):
    for sw in ("v_permlane32_swap_b32", "v_permlane16_swap_b32"):
        o(f"v_mov_b32 v{t}, v{v}"); o("s_nop 1"); o(f"{sw} v{t}, v{v}"); o("s_nop 0"); o(f"{op} v{v}, v{t}, v{v}")
def rnd2(a, b, t):
    o(f"v_cvt_pk_bf16_f32 v{t}, v{a}, v{b}"); o(f"v_lshlrev_b32 v{a}, 16, v{t}"); o(f"v_and_b32 v{b}, 0xffff0000, v{t}")
def tile(nextK, nextV, wK=8, wV=8):
    o(f"s_waitcnt vmcnt({wK})")
    for j in range(4):
        for t in range(2):
            cc = "0" if j == 0 else vr(S0+t*4, 4)
            o(f"v_mfma_f32_16x16x32_bf16 {vr(S0+t*4,4)}, {vr(KB+t*16+j*4,4)}, {vr(Q0+j*4,4)}, {cc}")
    n0 = len(L); nextK(); n = len(L) - n0
    if n < 8: o(f"s_nop {8-n-1}")
    for i in range(4): rnd2(S0+2*i, S0+2*i+1, vT[i])
    for i in range(8): o(f"v_mul_f32 v{S0+i}, s{sSCALE}, v{S0+i}")
    for i in range(4): rnd2(S0+2*i, S0+2*i+1, vT[i])
    mx = vT[4]
    o(f"v_max3_f32 v{mx}, v{S0}, v{S0+1}, v{S0+2}"); o(f"v_max3_f32 v{vT[5]}, v{S0+3}, v{S0+4}, v{S0+5}")
    o(f"v_max3_f32 v{mx}, v{mx}, v{S0+6}, v{S0+7}"); o(f"v_max3_f32 v{mx}, v{mx}, v{vT[5]}, v{vM}")
    xmax(mx, vT[5])
    o(f"v_sub_f32 v{vAL}, v{vM}, v{mx}"); o(f"v_mov_b32 v{vM}, v{mx}")
    o(f"v_mul_f32 v{vAL}, s{sLOG2E}, v{vAL}")
    for i in range(8): o(f"v_sub_f32 v{S0+i}, v{S0+i}, v{vM}")
    o(f"v_exp_f32 v{vAL}, v{vAL}")
    for i in range(8): o(f"v_mul_f32 v{S0+i}, s{sLOG2E}, v{S0+i}")
    for i in range(8): o(f"v_exp_f32 v{S0+i}, v{S0+i}")
    for i in range(16): o(f"v_pk_mul_f32 {vr(ACC+2*i,2)}, {vr(ACC+2*i,2)}, {vr(vAL,2)} op_sel_hi:[1,0]")
    for i in range(4): o(f"v_cvt_pk_bf16_f32 v{P0+i}, v{S0+2*i}, v{S0+2*i+1}")
    o(f"v_add_f32 v{vT[0]}, v{S0}, v{S0+1}"); o(f"v_add_f32 v{vT[1]}, v{S0+2}, v{S0+3}")
    o(f"v_add_f32 v{vT[2]}, v{S0+4}, v{S0+5}"); o(f"v_add_f32 v{vT[3]}, v{S0+6}, v{S0+7}")
    o(f"v_add_f32 v{vT[0]}, v{vT[0]}, v{vT[1]}"); o(f"v_add_f32 v{vT[2]}, v{vT[2]}, v{vT[3]}")
    o(f"v_add_f32 v{vT[0]}, v{vT[0]}, v{vT[2]}"); o(f"v_fma_f32 v{vL}, v{vL}, v{vAL}, v{vT[0]}")
    o(f"s_waitcnt vmcnt({wV})")
    pv(VB, P0)
    nextV()
def setoff(expr_reg_or_none, add):
    if add: o(f"s_add_u32 s{sOFF}, s{sOFF}, {hex(add)}")
    o(f"s_add_u32 s{sOFF2}, s{sOFF}, 0x1000")
def initsm():
    o(f"v_mov_b32 v{vM}, 0xff7fffff"); o(f"v_mov_b32 v{vL}, 0")
    for i in range(32): o(f"v_mov_b32 v{ACC+i}, 0")
def loadQ(base_expr_v):
    for j in range(4): o(f"ds_read_b128 {vr(Q0+j*4,4)}, v{base_expr_v} offset:{QS+j*64}")
    o("s_waitcnt lgkmcnt(0)")
def combine(vaddr, vstride, vml, mlstride, pairmode):
    ml = XT + 2; val = XT + 18
    for w in range(8): o(f"ds_read_b64 {vr(ml+2*w,2)}, v{vml} offset:{w*mlstride}")
    for w in range(8):
        if pairmode: o(f"ds_read_b64 {vr(val+2*w,2)}, v{vaddr} offset:{w*vstride}")
        else:
            o(f"v_add_u32 v{vT[0]}, {w*vstride}, v{vaddr}")
            o(f"ds_read2_b32 {vr(val+2*w,2)}, v{vT[0]} offset0:0 offset1:16")
    o("s_waitcnt lgkmcnt(8)")
    o(f"v_max3_f32 v{vM}, v{ml}, v{ml+2}, v{ml+4}"); o(f"v_max3_f32 v{vM}, v{vM}, v{ml+6}, v{ml+8}")
    o(f"v_max3_f32 v{vM}, v{vM}, v{ml+10}, v{ml+12}"); o(f"v_max_f32 v{vM}, v{vM}, v{ml+14}")
    for w in range(8): o(f"v_sub_f32 v{ml+2*w}, v{ml+2*w}, v{vM}")
    for w in range(8): o(f"v_mul_f32 v{ml+2*w}, s{sLOG2E}, v{ml+2*w}")
    for w in range(8): o(f"v_exp_f32 v{ml+2*w}, v{ml+2*w}")
    o("s_waitcnt lgkmcnt(0)")
    o(f"v_mul_f32 v{vL}, v{ml}, v{ml+1}"); o(f"v_mul_f32 v{XT}, v{ml}, v{val}"); o(f"v_mul_f32 v{XT+1}, v{ml}, v{val+1}")
    for w in range(1, 8):
        o(f"v_fmac_f32 v{vL}, v{ml+2*w}, v{ml+2*w+1}"); o(f"v_fmac_f32 v{XT}, v{ml+2*w}, v{val+2*w}"); o(f"v_fmac_f32 v{XT+1}, v{ml+2*w}, v{val+2*w+1}")
def spin_tail(label, done):
    o(f"s_cbranch_vccz {done}")
    o(f"s_sub_u32 s{sSPIN}, s{sSPIN}, 1"); o(f"s_cbranch_scc1 {done}")
    o("s_sleep 1"); o(f"s_branch {label}")
    lab(done)

o("s_cmp_ge_u32 s2, 256"); o("s_cbranch_scc1 L_end")
o("s_load_dwordx16 s[36:51], s[0:1], 0"); o("s_load_dwordx8 s[52:59], s[0:1], 64"); o("s_load_dwordx4 s[60:63], s[0:1], 96")
o(f"s_and_b32 s{sH}, s2, 31"); o(f"s_lshr_b32 s{sB}, s2, 5")
o(f"v_lshrrev_b32 v{vT[0]}, 6, v0"); o(f"v_and_b32 v{vLANE}, 63, v0")
o(f"v_readfirstlane_b32 s{sW}, v{vT[0]}")
o(f"v_lshrrev_b32 v{vG}, 4, v{vLANE}"); o(f"v_and_b32 v{vC}, 15, v{vLANE}")
o(f"s_mov_b32 s{sSEL0}, 0x05040100"); o(f"s_mov_b32 s{sSEL1}, 0x07060302")
o(f"s_mov_b32 s{sSCALE}, 0x3db504f3"); o(f"s_mov_b32 s{sLOG2E}, 0x3fb8aa3b"); o(f"s_mov_b32 s{sSPIN}, {opts['SPIN']}")
o(f"s_lshl_b32 s{sT0}, s2, 20"); o(f"s_lshl_b32 s{sT1}, s2, 17"); o(f"s_mov_b32 s91, s2")
c("lane offsets: K (mfma layout) and V (contiguous)")
o(f"v_and_b32 v{vT[0]}, 3, v{vC}"); o(f"v_lshrrev_b32 v{vT[1]}, 2, v{vC}"); o(f"v_lshl_add_u32 v{vT[0]}, v{vT[0]}, 2, v{vT[1]}")
o(f"v_lshlrev_b32 v{vT[0]}, 8, v{vT[0]}"); o(f"v_lshl_add_u32 v{vOK}, v{vG}, 4, v{vT[0]}")
o(f"v_lshlrev_b32 v{vOV}, 4, v{vLANE}")
o("s_waitcnt lgkmcnt(0)")
stamp()
mksrd(SWS, 62, WS_BYTES); mksrd(SX, 36, 16384); mksrd(SGW, 56, 2048)
o(f"s_cmp_lt_u32 s{sB}, 4"); o(f"s_cselect_b32 s{sT2}, s42, s52"); o(f"s_cselect_b32 s{sT3}, s43, s53")
mksrd(SWQ, sT2, 0x800000)
o(f"s_cmp_lt_u32 s{sW}, 4"); o(f"s_cselect_b32 s{sT2}, s44, s54"); o(f"s_cselect_b32 s{sT3}, s45, s55")
mksrd(SWO, sT2, 0x800000)
mksrd(SAK, 38, 0x100000, sT0); mksrd(SAV, 40, 0x100000, sT0); mksrd(SBK, 48, 0x20000, sT1); mksrd(SBV, 50, 0x20000, sT1)
mksrd(SDBG, 60, 256); mksrd(SOUT, 58, 16384)
c("---- sentinel clears of this WG's own outboxes")
for i in range(4): o(f"v_mov_b32 v{VT+i}, -1")
o(f"s_lshl_b32 s{sT0}, s91, 3"); o(f"s_add_u32 s{sT0}, s{sT0}, s{sW}"); o(f"s_lshl_b32 s{sT0}, s{sT0}, 9"); o(f"s_add_u32 s{sT0}, s{sT0}, {hex(PI)}")
o(f"s_and_b32 s{sT1}, s91, 0xf8"); o(f"s_add_u32 s{sT1}, s{sT1}, s{sW}"); o(f"s_lshl_b32 s{sT1}, s{sT1}, 3"); o(f"s_and_b32 s{sT2}, s91, 7"); o(f"s_add_u32 s{sT1}, s{sT1}, s{sT2}")
o(f"s_lshl_b32 s{sT1}, s{sT1}, 9"); o(f"s_add_u32 s{sT1}, s{sT1}, {hex(BPO-512)}")
o(f"v_mov_b32 v{vT[0]}, s{sT0}"); o(f"v_mov_b32 v{vT[1]}, s{sT1}"); o(f"v_cmp_gt_u32 vcc, 32, v{vLANE}"); o("s_nop 1")
o(f"v_cndmask_b32 v{vT[0]}, v{vT[1]}, v{vT[0]}, vcc"); o(f"v_add_u32 v{vT[0]}, v{vT[0]}, v{vOV}")
o(f"buffer_store_dwordx4 {vr(VT,4)}, v{vT[0]}, {srd(SWS)}, 0 offen sc1")
o(f"s_lshr_b32 s{sT0}, s{sW}, 2"); o(f"s_lshl_b32 s{sT2}, s{sH}, 1"); o(f"s_add_u32 s{sT0}, s{sT0}, s{sT2}"); o(f"s_lshl_b32 s{sT0}, s{sT0}, 3"); o(f"s_add_u32 s{sT0}, s{sT0}, s{sB}")
o(f"s_lshl_b32 s{sT0}, s{sT0}, 8"); o(f"s_and_b32 s{sT2}, s{sW}, 3"); o(f"s_lshl_b32 s{sT2}, s{sT2}, 6"); o(f"s_add_u32 s{sT0}, s{sT0}, s{sT2}"); o(f"s_add_u32 s{sT0}, s{sT0}, {hex(OI)}")
o(f"s_sub_u32 s{sT1}, s{sT1}, {hex(BPO-512)}"); o(f"s_lshr_b32 s{sT1}, s{sT1}, 5"); o(f"s_add_u32 s{sT1}, s{sT1}, {hex(BPML)}")
o(f"v_add_u32 v{vT[0]}, s{sT0}, v{vOV}"); o(f"v_mov_b32 v{vT[1]}, s{sT1}"); o(f"v_mov_b32 v{vT[2]}, {hex(OOB)}")
o(f"v_cmp_eq_u32 vcc, 4, v{vLANE}"); o("s_nop 1"); o(f"v_cndmask_b32 v{vT[1]}, v{vT[2]}, v{vT[1]}, vcc")
o(f"v_cmp_gt_u32 vcc, 4, v{vLANE}"); o("s_nop 1"); o(f"v_cndmask_b32 v{vT[0]}, v{vT[1]}, v{vT[0]}, vcc")
o(f"buffer_store_dwordx4 {vr(VT,4)}, v{vT[0]}, {srd(SWS)}, 0 offen sc1")
c("---- x operand (P0..3), gate inputs (XT..XT+15), wq tile (VB)")
o(f"s_and_b32 s{sT0}, s{sB}, 3"); o(f"s_lshl_b32 s{sT0}, s{sT0}, 8"); o(f"s_lshl_b32 s{sT1}, s{sW}, 5"); o(f"s_add_u32 s{sT0}, s{sT0}, s{sT1}")
o(f"v_and_b32 v{vT[3]}, 7, v{vC}"); o(f"v_lshlrev_b32 v{vT[3]}, 11, v{vT[3]}"); o(f"v_lshl_add_u32 v{vT[3]}, v{vG}, 4, v{vT[3]}")
o(f"s_lshl_b32 s{sT1}, s{sT0}, 1")
o(f"buffer_load_dwordx4 {vr(P0,4)}, v{vT[3]}, {srd(SX)}, s{sT1} offen")
o(f"v_lshlrev_b32 v{vT[4]}, 5, v{vLANE}"); o(f"s_lshl_b32 s{sT1}, s{sW}, 11")
o(f"buffer_load_dwordx4 {vr(XT,4)}, v{vT[4]}, {srd(SX)}, s{sT1} offen"); o(f"buffer_load_dwordx4 {vr(XT+4,4)}, v{vT[4]}, {srd(SX)}, s{sT1} offen offset:16")
o(f"buffer_load_dwordx4 {vr(XT+8,4)}, v{vT[4]}, {srd(SGW)}, 0 offen"); o(f"buffer_load_dwordx4 {vr(XT+12,4)}, v{vT[4]}, {srd(SGW)}, 0 offen offset:16")
o(f"v_lshlrev_b32 v{vT[5]}, 16, v{vG}"); o(f"v_lshl_add_u32 v{vT[5]}, v{vC}, 4, v{vT[5]}")
o(f"s_lshl_b32 s{sT0}, s{sT0}, 13"); o(f"s_lshl_b32 s{sT1}, s{sH}, 8"); o(f"s_add_u32 s{sT0}, s{sT0}, s{sT1}")
for i in range(8):
    o(f"buffer_load_dwordx4 {vr(VB+i*4,4)}, v{vT[5]}, {srd(SWQ)}, s{sT0} offen {NT}")
    if i < 7: o(f"s_add_u32 s{sT0}, s{sT0}, 0x2000")
o(f"s_lshl_b32 s{sOFF}, s{sW}, 13"); setoff(None, 0)
c("waves != 0 prefetch K(0) of branch B")
o(f"s_cmp_eq_u32 s{sW}, 0"); o("s_cbranch_scc1 L_w0_nopre")
if opts["PREK"]: loadK(SBK)
o(f"s_waitcnt vmcnt({16 if opts['PREK'] else 8})"); o("s_branch L_gate")
lab("L_w0_nopre"); o("s_waitcnt vmcnt(8)")
lab("L_gate")
c("---- gate for batch w: sigmoid(bf16(sum(bf16(x*gw))))")
for i in range(8):
    a, b_ = XT+16+2*i, XT+17+2*i
    o(f"v_lshlrev_b32 v{vT[0]}, 16, v{XT+i}"); o(f"v_lshlrev_b32 v{vT[1]}, 16, v{XT+8+i}"); o(f"v_mul_f32 v{a}, v{vT[0]}, v{vT[1]}")
    o(f"v_and_b32 v{vT[0]}, 0xffff0000, v{XT+i}"); o(f"v_and_b32 v{vT[1]}, 0xffff0000, v{XT+8+i}"); o(f"v_mul_f32 v{b_}, v{vT[0]}, v{vT[1]}")
    rnd2(a, b_, vT[2])
    o(f"v_add_f32 v{a}, v{a}, v{b_}")
    if i: o(f"v_add_f32 v{XT+16}, v{XT+16}, v{a}")
gs = XT + 16
for r in (8, 4, 2, 1):
    o("s_nop 1"); o(f"v_add_f32_dpp v{gs}, v{gs}, v{gs} row_ror:{r} row_mask:0xf bank_mask:0xf")
xmax(gs, vT[0], "v_add_f32")
rnd2(gs, gs+1, vT[2])
o(f"v_mul_f32 v{gs}, s{sLOG2E}, v{gs}"); o(f"v_exp_f32 v{gs}, -v{gs}"); o("s_nop 0"); o(f"v_add_f32 v{gs}, 1.0, v{gs}")
o(f"v_rcp_f32 v{gs}, v{gs}"); o("s_nop 0"); rnd2(gs, gs+1, vT[2])
o(f"v_sub_f32 v{gs+1}, 1.0, v{gs}"); rnd2(gs+1, gs+2, vT[2])
o(f"s_lshl_b32 s{sT0}, s{sW}, 3"); o(f"v_mov_b32 v{vT[0]}, s{sT0}"); o(f"ds_write_b64 v{vT[0]}, {vr(gs,2)} offset:{GATE}")
c("---- q partial: wq tile x x")
o(f"s_cmp_eq_u32 s{sW}, 0"); o("s_cbranch_scc1 L_w0_w")
o(f"s_waitcnt vmcnt({8 if opts['PREK'] else 0})"); o("s_branch L_qp")
lab("L_w0_w"); o("s_waitcnt vmcnt(0)")
lab("L_qp")
stamp()
pv(VB, P0, first=True)
o(f"s_cmp_eq_u32 s{sW}, 0"); o("s_cbranch_scc1 L_w0_nov")
if not opts["PREK"]: loadK(SBK)
loadV(SBV)
lab("L_w0_nov")
o(f"s_mul_i32 s{sT0}, s{sW}, 4224"); o(f"v_mul_u32_u24 v{vT[6]}, 528, v{vC}"); o(f"v_add_u32 v{vT[6]}, s{sT0}, v{vT[6]}")
o(f"v_lshl_add_u32 v{vT[7]}, v{vG}, 7, v{vT[6]}")
o(f"v_lshl_add_u32 v{vT[6]}, v{vG}, 4, v{vT[6]}")
o("s_mov_b32 exec_lo, 0x00ff00ff"); o("s_mov_b32 exec_hi, 0x00ff00ff"); o("s_nop 4")
for e in range(8):
    for r in range(4): o(f"ds_write_b32 v{vT[7]}, v{ACC+e*4+r} offset:{QRED+(8*r+e)*4}")
o("s_mov_b64 exec, -1")
o("s_waitcnt lgkmcnt(0)"); o("s_barrier")
o(f"s_cmp_lg_u32 s{sW}, 0"); o("s_cbranch_scc1 L_qwait")
c("---- wave 0: reduce 8 partials, publish, flag, poll, gather q")
o(f"v_lshrrev_b32 v{vT[0]}, 3, v{vLANE}"); o(f"v_mul_u32_u24 v{vT[0]}, 528, v{vT[0]}"); o(f"v_and_b32 v{vT[1]}, 7, v{vLANE}"); o(f"v_lshl_add_u32 v{vT[0]}, v{vT[1]}, 6, v{vT[0]}")
for half in range(2):
    for w in range(4):
        for k in range(4): o(f"ds_read_b128 {vr(KB+w*16+k*4,4)}, v{vT[0]} offset:{QRED+(half*4+w)*4224+k*16}")
    o("s_waitcnt lgkmcnt(0)")
    for w in range(4):
        for k in range(16):
            if half == 0 and w == 0: continue
            if half == 0 and w == 1: o(f"v_add_f32 v{ACC+k}, v{KB+k}, v{KB+16+k}")
            else: o(f"v_add_f32 v{ACC+k}, v{ACC+k}, v{KB+w*16+k}")
o(f"s_lshr_b32 s{sT0}, s{sB}, 2"); o(f"s_lshl_b32 s{sT0}, s{sT0}, 5"); o(f"s_add_u32 s{sT0}, s{sT0}, s{sH}"); o(f"s_lshl_b32 s{sT0}, s{sT0}, 2")
o(f"s_and_b32 s{sT1}, s{sB}, 3"); o(f"s_add_u32 s{sT0}, s{sT0}, s{sT1}"); o(f"s_lshl_b32 s{sT0}, s{sT0}, 12")
o(f"v_lshlrev_b32 v{vT[1]}, 6, v{vLANE}")
for k in range(4): o(f"buffer_store_dwordx4 {vr(ACC+4*k,4)}, v{vT[1]}, {srd(SWS)}, s{sT0} offen offset:{k*16} sc1")
o(f"v_mov_b32 v{vT[2]}, {hex(OOB)}"); o(f"v_mov_b32 v{vT[3]}, s91"); o(f"v_cmp_eq_u32 vcc, 0, v{vLANE}"); o(f"v_mov_b32 v{vT[4]}, 1")
o(f"v_cndmask_b32 v{vT[2]}, v{vT[2]}, v{vT[3]}, vcc")
o("s_waitcnt vmcnt(0)")
o(f"buffer_store_byte v{vT[4]}, v{vT[2]}, {srd(SDBG)}, 0 offen sc1")
stamp()
o(f"v_lshlrev_b32 v{vT[1]}, 2, v{vLANE}"); o(f"s_mov_b32 s{sT0}, 0x01010101")
lab("L_poll0")
o(f"buffer_load_dword v{vT[0]}, v{vT[1]}, {srd(SDBG)}, 0 offen sc1"); o("s_waitcnt vmcnt(0)")
o(f"v_cmp_ne_u32 vcc, s{sT0}, v{vT[0]}")
spin_tail("L_poll0", "L_poll0_done")
stamp()
o(f"v_lshrrev_b32 v{vT[0]}, 5, v{vLANE}"); o(f"v_lshlrev_b32 v{vT[0]}, 13, v{vT[0]}"); o(f"v_and_b32 v{vT[1]}, 31, v{vLANE}"); o(f"v_lshl_add_u32 v{vT[0]}, v{vT[1]}, 4, v{vT[0]}")
o(f"s_lshl_b32 s{sT1}, s{sB}, 9")
o(f"s_lshl_b32 s{sT0}, s{sH}, 14"); o(f"s_add_u32 s{sT0}, s{sT0}, s{sT1}"); o(f"s_add_u32 s{sT2}, s{sT0}, 0x1000")
o(f"buffer_load_dwordx4 {vr(XT,4)}, v{vT[0]}, {srd(SWS)}, s{sT0} offen sc1"); o(f"buffer_load_dwordx4 {vr(XT+4,4)}, v{vT[0]}, {srd(SWS)}, s{sT2} offen sc1")
o(f"s_and_b32 s{sT0}, s{sH}, 0x18"); o(f"s_add_u32 s{sT0}, s{sT0}, 32"); o(f"s_lshl_b32 s{sT0}, s{sT0}, 14"); o(f"s_add_u32 s{sT0}, s{sT0}, s{sT1}")
for v in range(1, 9):
    o(f"s_add_u32 s{sT2}, s{sT0}, 0x1000")
    o(f"buffer_load_dwordx4 {vr(XT+v*8,4)}, v{vT[0]}, {srd(SWS)}, s{sT0} offen sc1"); o(f"buffer_load_dwordx4 {vr(XT+v*8+4,4)}, v{vT[0]}, {srd(SWS)}, s{sT2} offen sc1")
    if v < 8: o(f"s_add_u32 s{sT0}, s{sT0}, 0x4000")
loadK(SBK); loadV(SBV)
o(f"v_lshlrev_b32 v{vT[1]}, 3, v{vT[1]}")
o("s_waitcnt vmcnt(16)")
for v in range(9):
    b0 = XT + v * 8
    for k in range(4): o(f"v_add_f32 v{b0+k}, v{b0+k}, v{b0+4+k}")
    for k in range(4): o(f"v_mov_b32 v{b0+4+k}, v{b0+k}")
    o("s_nop 0")
    for k in range(4): o(f"v_permlane32_swap_b32 v{b0+4+k}, v{b0+k}")
    o("s_nop 0")
    for k in range(4): o(f"v_add_f32 v{b0+k}, v{b0+k}, v{b0+4+k}")
    o(f"v_cvt_pk_bf16_f32 v{b0}, v{b0}, v{b0+1}"); o(f"v_cvt_pk_bf16_f32 v{b0+1}, v{b0+2}, v{b0+3}")
    o(f"ds_write_b64 v{vT[1]}, {vr(b0,2)} offset:{QS+v*256}")
o("s_waitcnt lgkmcnt(0)")
lab("L_qwait")
o("s_barrier")
stamp()
c("---- branch B: 2 tiles per wave")
o(f"v_and_b32 v{vT[8]}, 7, v{vC}"); o(f"v_lshlrev_b32 v{vT[8]}, 8, v{vT[8]}"); o(f"v_lshl_add_u32 v{vT[8]}, v{vG}, 4, v{vT[8]}"); o(f"v_add_u32 v{vT[8]}, 256, v{vT[8]}")
loadQ(vT[8]); initsm()
tile(lambda: (setoff(None, 0x10000), loadK(SBK)), lambda: loadV(SBV))
tile(lambda: (o(f"s_sub_u32 s{sOFF}, s{sOFF}, 0x10000"), setoff(None, 0), loadK(SAK)), lambda: loadV(SAV))
c("B epilogue: cross-wave combine, publish partial")
xmax(vL, vT[0], "v_add_f32")
o(f"s_lshl_b32 s{sT0}, s{sW}, 6"); o(f"v_lshlrev_b32 v{vT[1]}, 3, v{vC}"); o(f"v_add_u32 v{vT[1]}, s{sT0}, v{vT[1]}")
o("s_mov_b32 exec_lo, 0x00ff00ff"); o("s_mov_b32 exec_hi, 0x00ff00ff"); o("s_nop 1")
o(f"ds_write_b64 v{vT[1]}, {vr(vM,2)} offset:{BML}")
for e in range(8): o(f"ds_write_b128 v{vT[6]}, {vr(ACC+e*4,4)} offset:{BCOMB+e*64}")
o("s_mov_b64 exec, -1")
o("s_waitcnt lgkmcnt(0)"); o("s_barrier")
o(f"s_mul_i32 s{sT0}, s{sW}, 528"); o(f"s_add_u32 s{sT0}, s{sT0}, {BCOMB}"); o(f"v_lshlrev_b32 v{vT[2]}, 3, v{vLANE}"); o(f"v_add_u32 v{vT[1]}, s{sT0}, v{vT[2]}")
o(f"s_lshl_b32 s{sT0}, s{sW}, 3"); o(f"s_add_u32 s{sT0}, s{sT0}, {BML}"); o(f"v_mov_b32 v{vT[3]}, s{sT0}")
combine(vT[1], 4224, vT[3], 64, True)
o(f"s_and_b32 s{sT1}, s91, 0xf8"); o(f"s_add_u32 s{sT1}, s{sT1}, s{sW}"); o(f"s_lshl_b32 s{sT1}, s{sT1}, 3"); o(f"s_and_b32 s{sT2}, s91, 7"); o(f"s_add_u32 s{sT1}, s{sT1}, s{sT2}")
o(f"s_lshl_b32 s{sT0}, s{sT1}, 9"); o(f"s_add_u32 s{sT0}, s{sT0}, {hex(BPO)}"); o(f"s_lshl_b32 s{sT1}, s{sT1}, 4"); o(f"s_add_u32 s{sT1}, s{sT1}, {hex(BPML)}")
o(f"buffer_store_dwordx2 {vr(XT,2)}, v{vT[2]}, {srd(SWS)}, s{sT0} offen sc1")
o(f"v_mov_b32 v{vT[3]}, {hex(OOB)}"); o(f"v_cmp_eq_u32 vcc, 0, v{vLANE}"); o("s_nop 1"); o(f"v_cndmask_b32 v{vT[3]}, v{vT[3]}, 0, vcc")
o(f"buffer_store_dwordx2 {vr(vM,2)}, v{vT[3]}, {srd(SWS)}, s{sT1} offen sc1")
stamp()
c("---- branch A: 16 tiles per wave")
o(f"v_lshlrev_b32 v{vT[8]}, 4, v{vG}")
loadQ(vT[8]); initsm()
o(f"s_mov_b32 s{sCNT}, 15")
lab("L_loopA")
tile(lambda: (setoff(None, 0x10000), loadK(SAK)), lambda: loadV(SAV))
o(f"s_sub_u32 s{sCNT}, s{sCNT}, 1"); o(f"s_cmp_lg_u32 s{sCNT}, 0"); o("s_cbranch_scc1 L_loopA")
def last_nextK():
    o(f"s_lshl_b32 s{sT0}, s{sH}, 7"); o(f"s_and_b32 s{sT1}, s{sW}, 3"); o(f"s_lshl_b32 s{sT1}, s{sT1}, 5"); o(f"s_add_u32 s{sT0}, s{sT0}, s{sT1}")
    o(f"s_lshl_b32 s{sT0}, s{sT0}, 11"); o(f"s_lshl_b32 s{sT1}, s{sB}, 8"); o(f"s_add_u32 s{sT0}, s{sT0}, s{sT1}")
    o(f"v_lshlrev_b32 v{vT[9]}, 14, v{vG}"); o(f"v_lshl_add_u32 v{vT[9]}, v{vC}, 4, v{vT[9]}")
    o(f"s_lshl_b32 s{sT2}, s91, 3"); o(f"s_add_u32 s{sT2}, s{sT2}, s{sW}"); o(f"s_lshl_b32 s{sT3}, s{sT2}, 4"); o(f"s_add_u32 s{sT3}, s{sT3}, {hex(BPML)}")
    o(f"s_lshl_b32 s{sT2}, s{sT2}, 9"); o(f"s_add_u32 s{sT2}, s{sT2}, {hex(BPO)}")
    o(f"v_lshlrev_b32 v{XT+44}, 3, v{vLANE}"); o(f"v_mov_b32 v{XT+45}, 0")
    o(f"buffer_load_dwordx2 {vr(XT+40,2)}, v{XT+44}, {srd(SWS)}, s{sT2} offen sc1")
    o(f"buffer_load_dwordx2 {vr(XT+42,2)}, v{XT+45}, {srd(SWS)}, s{sT3} offen sc1")
    for i in range(8):
        o(f"buffer_load_dwordx4 {vr(KB+i*4,4)}, v{vT[9]}, {srd(SWO)}, s{sT0} offen offset:{(i&1)*2048} {NT}")
        if i & 1 and i < 7: o(f"s_add_u32 s{sT0}, s{sT0}, 0x1000")
tile(last_nextK, lambda: None, wK=8, wV=8)
stamp()
c("---- tail: combine A (wave 0) and B splits (wave 1)")
lab("L_pollB")
o(f"v_cmp_eq_u32 vcc, -1, v{XT+40}"); o(f"v_cmp_eq_u32 s[2:3], -1, v{XT+41}"); o("s_or_b64 vcc, vcc, s[2:3]")
o(f"v_cmp_eq_u32 s[2:3], -1, v{XT+42}"); o("s_or_b64 vcc, vcc, s[2:3]"); o(f"v_cmp_eq_u32 s[2:3], -1, v{XT+43}"); o("s_or_b64 vcc, vcc, s[2:3]")
o("s_cbranch_scc0 L_pollB_done")
o(f"s_sub_u32 s{sSPIN}, s{sSPIN}, 1"); o("s_cbranch_scc1 L_pollB_done"); o("s_sleep 1")
o(f"buffer_load_dwordx2 {vr(XT+40,2)}, v{XT+44}, {srd(SWS)}, s{sT2} offen sc1")
o(f"buffer_load_dwordx2 {vr(XT+42,2)}, v{XT+45}, {srd(SWS)}, s{sT3} offen sc1")
o("s_waitcnt vmcnt(0)"); o("s_branch L_pollB")
lab("L_pollB_done")
xmax(vL, vT[0], "v_add_f32")
o(f"s_lshl_b32 s{sT0}, s{sW}, 9"); o(f"v_lshl_add_u32 v{vT[1]}, v{vG}, 4, s{sT0}"); o(f"v_add_u32 v{vT[2]}, s{sT0}, v{XT+44}")
o(f"s_lshl_b32 s{sT0}, s{sW}, 3"); o(f"v_mov_b32 v{vT[3]}, s{sT0}")
o(f"ds_write_b64 v{vT[2]}, {vr(XT+40,2)} offset:{ACOMB+B2D}"); o(f"ds_write_b64 v{vT[3]}, {vr(XT+42,2)} offset:{AML+B2D}")
o(f"ds_write_b64 v{vT[3]}, {vr(vM,2)} offset:{AML}")
o("s_mov_b32 exec_lo, 0x00010001"); o("s_mov_b32 exec_hi, 0x00010001"); o("s_nop 1")
for e in range(8): o(f"ds_write_b128 v{vT[1]}, {vr(ACC+e*4,4)} offset:{ACOMB+e*64}")
o("s_mov_b64 exec, -1")
o(f"v_and_b32 v{vT[4]}, 7, v{vC}"); o(f"s_lshr_b32 s{sT1}, s{sW}, 2"); o(f"s_lshl_b32 s{sT0}, s{sT1}, 2"); o(f"v_lshl_add_u32 v{vT[5]}, v{vT[4]}, 3, s{sT0}")
o(f"ds_read_b32 v{vAL}, v{vT[5]} offset:{GATE}")
o("s_waitcnt lgkmcnt(0)"); o("s_barrier")
o(f"s_cmp_gt_u32 s{sW}, 1"); o("s_cbranch_scc1 L_nocomb")
o(f"s_mul_i32 s{sT0}, s{sW}, {B2D}"); o(f"s_add_u32 s{sT2}, s{sT0}, {AML}"); o(f"s_add_u32 s{sT0}, s{sT0}, {ACOMB}")
o(f"v_and_b32 v{vT[1]}, 3, v{vLANE}"); o(f"v_lshlrev_b32 v{vT[1]}, 7, v{vT[1]}"); o(f"v_lshrrev_b32 v{vT[2]}, 2, v{vLANE}"); o(f"v_lshl_add_u32 v{vT[1]}, v{vT[2]}, 2, v{vT[1]}")
o(f"v_add_u32 v{vT[1]}, s{sT0}, v{vT[1]}"); o(f"v_mov_b32 v{vT[3]}, s{sT2}")
combine(vT[1], 512, vT[3], 8, False)
o(f"v_rcp_f32 v{vL}, v{vL}"); o("s_nop 0"); o(f"v_mul_f32 v{XT}, v{XT}, v{vL}"); o(f"v_mul_f32 v{XT+1}, v{XT+1}, v{vL}")
o(f"v_cvt_pk_bf16_f32 v{XT}, v{XT}, v{XT+1}")
o(f"s_lshl_b32 s{sT0}, s{sH}, 1"); o(f"s_add_u32 s{sT0}, s{sT0}, s{sW}"); o(f"s_lshl_b32 s{sT0}, s{sT0}, 3"); o(f"s_add_u32 s{sT0}, s{sT0}, s{sB}"); o(f"s_lshl_b32 s{sT0}, s{sT0}, 8"); o(f"s_add_u32 s{sT0}, s{sT0}, {hex(OI)}")
o(f"v_lshlrev_b32 v{vT[2]}, 2, v{vLANE}")
o(f"buffer_store_dword v{XT}, v{vT[2]}, {srd(SWS)}, s{sT0} offen sc1")
lab("L_nocomb")
stamp()
c("poll o operand: OI[(h*2+mat)*8 + (c&7)]*256 + (w&3)*64 + g*16")
o(f"s_lshr_b32 s{sT1}, s{sW}, 2"); o(f"s_lshl_b32 s{sT0}, s{sH}, 1"); o(f"s_add_u32 s{sT0}, s{sT0}, s{sT1}"); o(f"s_lshl_b32 s{sT0}, s{sT0}, 11")
o(f"s_and_b32 s{sT1}, s{sW}, 3"); o(f"s_lshl_b32 s{sT1}, s{sT1}, 6"); o(f"s_add_u32 s{sT0}, s{sT0}, s{sT1}"); o(f"s_add_u32 s{sT0}, s{sT0}, {hex(OI)}")
o(f"v_lshlrev_b32 v{vT[4]}, 8, v{vT[4]}"); o(f"v_lshl_add_u32 v{vT[4]}, v{vG}, 4, v{vT[4]}")
lab("L_pollO")
o(f"buffer_load_dwordx4 {vr(P0,4)}, v{vT[4]}, {srd(SWS)}, s{sT0} offen sc1"); o("s_waitcnt vmcnt(0)")
o(f"v_max3_u32 v{vT[0]}, v{P0}, v{P0+1}, v{P0+2}"); o(f"v_max_u32 v{vT[0]}, v{vT[0]}, v{P0+3}"); o(f"v_cmp_eq_u32 vcc, -1, v{vT[0]}")
spin_tail("L_pollO", "L_pollO_done")
stamp()
pv(KB, P0, first=True)
o("s_nop 7")
for i in range(16): o(f"v_pk_mul_f32 {vr(ACC+2*i,2)}, {vr(ACC+2*i,2)}, {vr(vAL,2)} op_sel_hi:[1,0]")
o("s_mov_b32 exec_lo, 0x00ff00ff"); o("s_mov_b32 exec_hi, 0x00ff00ff"); o("s_nop 1")
for e in range(8): o(f"ds_write_b128 v{vT[6]}, {vr(ACC+e*4,4)} offset:{ORED+e*64}")
o("s_mov_b64 exec, -1")
o(f"s_mul_i32 s{sT0}, s{sW}, 528"); o(f"s_add_u32 s{sT0}, s{sT0}, {ORED}")
o(f"v_and_b32 v{vT[1]}, 3, v{vLANE}"); o(f"v_lshlrev_b32 v{vT[1]}, 7, v{vT[1]}"); o(f"v_lshrrev_b32 v{vT[2]}, 2, v{vLANE}"); o(f"v_lshl_add_u32 v{vT[1]}, v{vT[2]}, 2, v{vT[1]}")
o(f"v_add_u32 v{vT[1]}, s{sT0}, v{vT[1]}")
for w in range(1, 8): o(f"v_add_u32 v{XT+16+w}, {w*4224}, v{vT[1]}")
o("s_waitcnt lgkmcnt(0)"); o("s_barrier")
for w in range(8): o(f"ds_read2_b32 {vr(XT+2*w,2)}, v{vT[1] if w==0 else XT+16+w} offset0:0 offset1:16")
o(f"s_lshl_b32 s{sT0}, s91, 3"); o(f"s_add_u32 s{sT0}, s{sT0}, s{sW}"); o(f"s_lshl_b32 s{sT0}, s{sT0}, 9"); o(f"s_add_u32 s{sT0}, s{sT0}, {hex(PI)}")
o("s_waitcnt lgkmcnt(0)")
for st in (8, 4, 2):
    for k in range(st): o(f"v_add_f32 v{XT+k}, v{XT+k}, v{XT+st+k}")
o(f"buffer_store_dwordx2 {vr(XT,2)}, v{XT+44}, {srd(SWS)}, s{sT0} offen sc1")
o(f"s_cmp_lg_u32 s{sW}, 0"); o("s_cbranch_scc1 L_end")
stamp()
c("final reduce: PI[(b*32+h')*8 + (h>>2)]*512 + (h&3)*128 + (l&7)*16, h' = (l>>3)+8k")
o(f"s_lshl_b32 s{sT0}, s{sB}, 17"); o(f"s_lshl_b32 s{sT1}, s{sH}, 7"); o(f"s_add_u32 s{sT0}, s{sT0}, s{sT1}"); o(f"s_add_u32 s{sT0}, s{sT0}, {hex(PI)}")
o(f"s_add_u32 s{sT1}, s{sT0}, 0x8000"); o(f"s_add_u32 s{sT2}, s{sT0}, 0x10000"); o(f"s_add_u32 s{sT3}, s{sT0}, 0x18000")
o(f"v_lshrrev_b32 v{vT[1]}, 3, v{vLANE}"); o(f"v_lshlrev_b32 v{vT[1]}, 12, v{vT[1]}"); o(f"v_and_b32 v{vT[2]}, 7, v{vLANE}"); o(f"v_lshl_add_u32 v{vT[1]}, v{vT[2]}, 4, v{vT[1]}")
lab("L_pollP")
for k, sr in enumerate((sT0, sT1, sT2, sT3)): o(f"buffer_load_dwordx4 {vr(XT+4*k,4)}, v{vT[1]}, {srd(SWS)}, s{sr} offen sc1")
o("s_waitcnt vmcnt(0)")
o(f"v_max3_u32 v{vT[0]}, v{XT}, v{XT+1}, v{XT+2}")
for k in range(3, 15, 2): o(f"v_max3_u32 v{vT[0]}, v{vT[0]}, v{XT+k}, v{XT+k+1}")
o(f"v_max_u32 v{vT[0]}, v{vT[0]}, v{XT+15}"); o(f"v_cmp_eq_u32 vcc, -1, v{vT[0]}")
spin_tail("L_pollP", "L_pollP_done")
for st in (8, 4):
    for k in range(st): o(f"v_add_f32 v{XT+k}, v{XT+k}, v{XT+st+k}")
o("s_nop 1")
for k in range(4): o(f"v_add_f32_dpp v{XT+k}, v{XT+k}, v{XT+k} row_ror:8 row_mask:0xf bank_mask:0xf")
for sw in ("v_permlane32_swap_b32", "v_permlane16_swap_b32"):
    for k in range(4): o(f"v_mov_b32 v{XT+4+k}, v{XT+k}")
    o("s_nop 0")
    for k in range(4): o(f"{sw} v{XT+4+k}, v{XT+k}")
    o("s_nop 0")
    for k in range(4): o(f"v_add_f32 v{XT+k}, v{XT+k}, v{XT+4+k}")
o(f"v_cvt_pk_bf16_f32 v{XT}, v{XT}, v{XT+1}"); o(f"v_cvt_pk_bf16_f32 v{XT+1}, v{XT+2}, v{XT+3}")
o(f"s_lshr_b32 s{sT0}, s{sH}, 2"); o(f"s_lshl_b32 s{sT0}, s{sT0}, 11"); o(f"s_lshl_b32 s{sT1}, s{sB}, 8"); o(f"s_add_u32 s{sT0}, s{sT0}, s{sT1}")
o(f"s_and_b32 s{sT1}, s{sH}, 3"); o(f"s_lshl_b32 s{sT1}, s{sT1}, 6"); o(f"s_add_u32 s{sT0}, s{sT0}, s{sT1}")
o(f"v_mov_b32 v{vT[3]}, {hex(OOB)}"); o(f"v_cmp_gt_u32 vcc, 8, v{vLANE}"); o("s_nop 1"); o(f"v_cndmask_b32 v{vT[3]}, v{vT[3]}, v{XT+44}, vcc")
o(f"buffer_store_dwordx2 {vr(XT,2)}, v{vT[3]}, {srd(SOUT)}, s{sT0} offen")
if TS:
    stamp()
    o(f"s_lshl_b32 s{sT0}, s91, 6"); o(f"s_add_u32 s{sT0}, s{sT0}, {hex(TSO)}"); o(f"v_mov_b32 v{vT[1]}, 0")
    o("s_getreg_b32 s2, hwreg(HW_REG_XCC_ID)"); o(f"v_mov_b32 v{vT[0]}, s2")
    o(f"buffer_store_dword v{vT[0]}, v{vT[1]}, {srd(SWS)}, s{sT0} offen offset:60")
    for i in range(nstamp[0]):
        o(f"v_mov_b32 v{vT[0]}, s{sTS+i}"); o(f"buffer_store_dword v{vT[0]}, v{vT[1]}, {srd(SWS)}, s{sT0} offen offset:{i*4}")
lab("L_end")
hdr = open("cdna_kernels/" + NAME + ".s.ref").read().split("\n")
out = []
for ln in hdr:
    if ln.startswith("; @launch"): out.append(f"; @launch grid=(256,1,1) block=(512,1,1) lds={LDS_BYTES}")
    elif ln.startswith(NAME + "_kernel:"):
        out.append(ln); out += L; break
    else: out.append(ln)
out.append("s_endpgm")
tail = hdr[hdr.index('.section .rodata,"a"'):]
out += [t.replace("next_free_vgpr 256", "next_free_vgpr 232").replace("accum_offset 256", "accum_offset 232") for t in tail]
open(sys.argv[1], "w").write("\n".join(out) + "\n")
print("lines", len(L), "lds", LDS_BYTES, "stamps", nstamp[0])
```

```python
import sys
NAME = "gated_mix__mha_block_cached__gqa_block_cached__decode"
opts = dict(TS=0, SPIN=400000, NT="nt", WQNT="", NSTAT=7, DYN=1)
for a in sys.argv[2:]:
    k, v = a.split("="); opts[k] = int(v) if v.lstrip("-").isdigit() else v
TS = opts["TS"]; NT = opts["NT"]
L = []
def o(s): L.append("    " + s)
def lab(s): L.append(s + ":")
def c(s): L.append("    ; " + s)
SAK, SAV, SBK, SBV, SWQ, SWO, SX, SWS, SDBG, SOUT, SGW = 4, 8, 12, 16, 20, 24, 28, 32, 64, 68, 72
sH, sB, sW = 76, 77, 78
sT0, sT1, sT2, sT3 = 79, 80, 81, 82
sSEL0, sSEL1, sSCALE, sLOG2E, sOFF, sOFF2, sCNT, sSPIN = 83, 84, 85, 86, 87, 88, 89, 90
TSR = list(range(92,102))+[36,37,38,39]
def srd(r): return f"s[{r}:{r+3}]"
vLANE, vG, vC, vOK, vOV = 1, 2, 3, 4, 5
vT = list(range(6, 16))
vM, vL, vAL, vAL1 = 16, 17, 18, 19
S0, P0, Q0, ACC, VT, KB, VB, XT = 20, 28, 32, 48, 80, 96, 128, 160
def vr(b, n): return f"v[{b}:{b+n-1}]"
BML = 0; ACOMB = 512; AML = ACOMB + 4096
B2D = 4096 + 64; QS = ACOMB + 2 * B2D; GATE = QS + 2304
CNT = GATE + 64; QA = CNT + 64
QRED = BCOMB = ORED = QA + 4096; LDS_BYTES = QRED + 33792
assert QRED % 16 == 0
QP, BPO, BPML, OI, PI, TSO = 0, 0x100000, 0x200000, 0x210000, 0x300000, 0x400000
WS_BYTES = 0x410000
OOB = 0x7ffffff0
nstamp = [0]
def stamp():
    if not TS: return
    i = nstamp[0]; nstamp[0] += 1
    assert i < 14
    o("s_memrealtime s[2:3]"); o("s_waitcnt lgkmcnt(0)"); o(f"s_mov_b32 s{TSR[i]}, s2")
def mksrd(r, ptr, nbytes, offreg=None):
    if offreg is None:
        o(f"s_mov_b32 s{r}, s{ptr}"); o(f"s_and_b32 s{r+1}, s{ptr+1}, 0xffff")
    else:
        o(f"s_add_u32 s{r}, s{ptr}, s{offreg}"); o(f"s_addc_u32 s{r+1}, s{ptr+1}, 0"); o(f"s_and_b32 s{r+1}, s{r+1}, 0xffff")
    o(f"s_mov_b32 s{r+2}, {hex(nbytes)}"); o(f"s_mov_b32 s{r+3}, 0x00020000")
def loadK(sr, dst=KB):
    for t in range(2):
        for j in range(4):
            o(f"buffer_load_dwordx4 {vr(dst+t*16+j*4,4)}, v{vOK}, {srd(sr)}, s{sOFF if t==0 else sOFF2} offen offset:{j*64} {NT}")
def loadV(sr, dst=VB):
    for i in range(8):
        o(f"buffer_load_dwordx4 {vr(dst+i*4,4)}, v{vOV}, {srd(sr)}, s{sOFF if i<4 else sOFF2} offen offset:{(i&3)*1024} {NT}")
def pv(src, pb, first=False):
    def perms(e):
        w_, hb = e >> 1, e & 1
        for u in range(4):
            o(f"v_perm_b32 v{VT+(e&3)*4+u}, v{src+(2*u+1)*4+w_}, v{src+(2*u)*4+w_}, s{sSEL1 if hb else sSEL0}")
    perms(0)
    for e in range(8):
        if e + 1 < 8: perms(e + 1)
        else: o("s_nop 1")
        cc = "0" if first else vr(ACC+e*4, 4)
        o(f"v_mfma_f32_16x16x32_bf16 {vr(ACC+e*4,4)}, {vr(VT+(e&3)*4,4)}, {vr(pb,4)}, {cc}")
def xmax(v, t, op="v_max_f32"):
    for sw in ("v_permlane32_swap_b32", "v_permlane16_swap_b32"):
        o(f"v_mov_b32 v{t}, v{v}"); o("s_nop 1"); o(f"{sw} v{t}, v{v}"); o("s_nop 0"); o(f"{op} v{v}, v{t}, v{v}")
def rnd2(a, b, t):
    o(f"v_cvt_pk_bf16_f32 v{t}, v{a}, v{b}"); o(f"v_lshlrev_b32 v{a}, 16, v{t}"); o(f"v_and_b32 v{b}, 0xffff0000, v{t}")
def tile(nextK, nextV, wK=8, wV=8):
    o(f"s_waitcnt vmcnt({wK})")
    for j in range(4):
        for t in range(2):
            cc = "0" if j == 0 else vr(S0+t*4, 4)
            o(f"v_mfma_f32_16x16x32_bf16 {vr(S0+t*4,4)}, {vr(KB+t*16+j*4,4)}, {vr(Q0+j*4,4)}, {cc}")
    n0 = len(L); nextK(); n = len(L) - n0
    if n < 8: o(f"s_nop {8-n-1}")
    for i in range(4): rnd2(S0+2*i, S0+2*i+1, vT[i])
    for i in range(8): o(f"v_mul_f32 v{S0+i}, s{sSCALE}, v{S0+i}")
    for i in range(4): rnd2(S0+2*i, S0+2*i+1, vT[i])
    mx = vT[4]
    o(f"v_max3_f32 v{mx}, v{S0}, v{S0+1}, v{S0+2}"); o(f"v_max3_f32 v{vT[5]}, v{S0+3}, v{S0+4}, v{S0+5}")
    o(f"v_max3_f32 v{mx}, v{mx}, v{S0+6}, v{S0+7}"); o(f"v_max3_f32 v{mx}, v{mx}, v{vT[5]}, v{vM}")
    xmax(mx, vT[5])
    o(f"v_sub_f32 v{vAL}, v{vM}, v{mx}"); o(f"v_mov_b32 v{vM}, v{mx}")
    o(f"v_mul_f32 v{vAL}, s{sLOG2E}, v{vAL}")
    for i in range(8): o(f"v_sub_f32 v{S0+i}, v{S0+i}, v{vM}")
    o(f"v_exp_f32 v{vAL}, v{vAL}")
    for i in range(8): o(f"v_mul_f32 v{S0+i}, s{sLOG2E}, v{S0+i}")
    for i in range(8): o(f"v_exp_f32 v{S0+i}, v{S0+i}")
    for i in range(16): o(f"v_pk_mul_f32 {vr(ACC+2*i,2)}, {vr(ACC+2*i,2)}, {vr(vAL,2)} op_sel_hi:[1,0]")
    for i in range(4): o(f"v_cvt_pk_bf16_f32 v{P0+i}, v{S0+2*i}, v{S0+2*i+1}")
    o(f"v_add_f32 v{vT[0]}, v{S0}, v{S0+1}"); o(f"v_add_f32 v{vT[1]}, v{S0+2}, v{S0+3}")
    o(f"v_add_f32 v{vT[2]}, v{S0+4}, v{S0+5}"); o(f"v_add_f32 v{vT[3]}, v{S0+6}, v{S0+7}")
    o(f"v_add_f32 v{vT[0]}, v{vT[0]}, v{vT[1]}"); o(f"v_add_f32 v{vT[2]}, v{vT[2]}, v{vT[3]}")
    o(f"v_add_f32 v{vT[0]}, v{vT[0]}, v{vT[2]}"); o(f"v_fma_f32 v{vL}, v{vL}, v{vAL}, v{vT[0]}")
    o(f"s_waitcnt vmcnt({wV})")
    pv(VB, P0)
    nextV()
def setoff(expr_reg_or_none, add):
    if add: o(f"s_add_u32 s{sOFF}, s{sOFF}, {hex(add)}")
    o(f"s_add_u32 s{sOFF2}, s{sOFF}, 0x1000")
def initsm():
    o(f"v_mov_b32 v{vM}, 0xff7fffff"); o(f"v_mov_b32 v{vL}, 0")
    for i in range(32): o(f"v_mov_b32 v{ACC+i}, 0")
def loadQ(base_expr_v):
    for j in range(4): o(f"ds_read_b128 {vr(Q0+j*4,4)}, v{base_expr_v} offset:{QS+j*64}")
    o("s_waitcnt lgkmcnt(0)")
def combine(vaddr, vstride, vml, mlstride, pairmode):
    ml = XT + 2; val = XT + 18
    for w in range(8): o(f"ds_read_b64 {vr(ml+2*w,2)}, v{vml} offset:{w*mlstride}")
    for w in range(8):
        if pairmode: o(f"ds_read_b64 {vr(val+2*w,2)}, v{vaddr} offset:{w*vstride}")
        else:
            o(f"v_add_u32 v{vT[0]}, {w*vstride}, v{vaddr}")
            o(f"ds_read2_b32 {vr(val+2*w,2)}, v{vT[0]} offset0:0 offset1:16")
    o("s_waitcnt lgkmcnt(8)")
    o(f"v_max3_f32 v{vM}, v{ml}, v{ml+2}, v{ml+4}"); o(f"v_max3_f32 v{vM}, v{vM}, v{ml+6}, v{ml+8}")
    o(f"v_max3_f32 v{vM}, v{vM}, v{ml+10}, v{ml+12}"); o(f"v_max_f32 v{vM}, v{vM}, v{ml+14}")
    for w in range(8): o(f"v_sub_f32 v{ml+2*w}, v{ml+2*w}, v{vM}")
    for w in range(8): o(f"v_mul_f32 v{ml+2*w}, s{sLOG2E}, v{ml+2*w}")
    for w in range(8): o(f"v_exp_f32 v{ml+2*w}, v{ml+2*w}")
    o("s_waitcnt lgkmcnt(0)")
    o(f"v_mul_f32 v{vL}, v{ml}, v{ml+1}"); o(f"v_mul_f32 v{XT}, v{ml}, v{val}"); o(f"v_mul_f32 v{XT+1}, v{ml}, v{val+1}")
    for w in range(1, 8):
        o(f"v_fmac_f32 v{vL}, v{ml+2*w}, v{ml+2*w+1}"); o(f"v_fmac_f32 v{XT}, v{ml+2*w}, v{val+2*w}"); o(f"v_fmac_f32 v{XT+1}, v{ml+2*w}, v{val+2*w+1}")
def spin_tail(label, done):
    o(f"s_cbranch_vccz {done}")
    o(f"s_sub_u32 s{sSPIN}, s{sSPIN}, 1"); o(f"s_cbranch_scc1 {done}")
    o("s_sleep 1"); o(f"s_branch {label}")
    lab(done)

SWQB = 44
sKN, sBD = 48, 49
NSTAT = opts["NSTAT"]; WQNT = opts["WQNT"]
uid = [0]
def U(p): uid[0] += 1; return f"L_{p}{uid[0]}"
def lds_ctr(op, off, rd):
    o(f"v_mov_b32 v{vT[0]}, 0"); o(f"v_mov_b32 v{vT[1]}, 1"); o("s_mov_b64 exec, 1")
    if op == "add": o(f"ds_add_u32 v{vT[0]}, v{vT[1]} offset:{off}")
    elif op == "addr": o(f"ds_add_rtn_u32 v{vT[2]}, v{vT[0]}, v{vT[1]} offset:{off}")
    else: o(f"ds_read_b32 v{vT[2]}, v{vT[0]} offset:{off}")
    o("s_mov_b64 exec, -1")
    if rd is not None: o("s_waitcnt lgkmcnt(0)"); o(f"v_readfirstlane_b32 s{rd}, v{vT[2]}")
def decide_dyn(bdone_known):
    dn, fin, isb, nb = U("dn"), U("fin"), U("isb"), U("nb")
    if not bdone_known:
        o(f"s_cmp_lg_u32 s{sBD}, 0"); o(f"s_cbranch_scc1 {nb}")
        lds_ctr("rd", CNT+4, sT0); o(f"s_cmp_ge_u32 s{sT0}, 8"); o(f"s_cbranch_scc1 {isb}")
        lab(nb)
    if opts["DYN"]:
        lds_ctr("addr", CNT+12, sT0); o(f"s_add_u32 s{sT0}, s{sT0}, {NSTAT*8}")
    else:
        o(f"s_add_u32 s50, s50, 8"); o(f"s_mov_b32 s{sT0}, s50")
    o(f"s_cmp_ge_u32 s{sT0}, 120"); o(f"s_cbranch_scc1 {fin}")
    o(f"s_mov_b32 s{sKN}, 0"); o(f"s_lshl_b32 s{sOFF}, s{sT0}, 13"); o(f"s_branch {dn}")
    lab(fin)
    if not bdone_known:
        f2, sp = U("f2"), U("sp")
        o(f"s_cmp_lg_u32 s{sBD}, 0"); o(f"s_cbranch_scc1 {f2}")
        lab(sp)
        lds_ctr("rd", CNT+4, sT0); o(f"s_cmp_ge_u32 s{sT0}, 8"); o(f"s_cbranch_scc1 {isb}")
        o(f"s_sub_u32 s{sSPIN}, s{sSPIN}, 1"); o(f"s_cbranch_scc1 {isb}"); o("s_sleep 2"); o(f"s_branch {sp}")
        lab(isb)
        o(f"s_mov_b32 s{sKN}, 1"); o(f"s_lshl_b32 s{sOFF}, s{sW}, 13"); o(f"s_branch {dn}")
        lab(f2)
    o(f"s_mov_b32 s{sKN}, 2"); o(f"s_add_u32 s{sT0}, s{sW}, 120"); o(f"s_lshl_b32 s{sOFF}, s{sT0}, 13")
    lab(dn)
    setoff(None, 0)
def sel_load(fn, a, b_):
    l1, l2 = U("sb"), U("sd")
    o(f"s_cmp_eq_u32 s{sKN}, 1"); o(f"s_cbranch_scc1 {l1}"); fn(a); o(f"s_branch {l2}"); lab(l1); fn(b_); lab(l2)

o("s_cmp_ge_u32 s2, 256"); o("s_cbranch_scc1 L_end")
o("s_load_dwordx16 s[36:51], s[0:1], 0"); o("s_load_dwordx8 s[52:59], s[0:1], 64"); o("s_load_dwordx4 s[60:63], s[0:1], 96")
o(f"s_and_b32 s{sH}, s2, 31"); o(f"s_lshr_b32 s{sB}, s2, 5")
o(f"v_lshrrev_b32 v{vT[0]}, 6, v0"); o(f"v_and_b32 v{vLANE}, 63, v0")
o(f"v_readfirstlane_b32 s{sW}, v{vT[0]}")
o(f"v_lshrrev_b32 v{vG}, 4, v{vLANE}"); o(f"v_and_b32 v{vC}, 15, v{vLANE}")
o(f"s_mov_b32 s91, s2")
c("x operand offsets / wq offsets")
o(f"v_and_b32 v{vT[3]}, 7, v{vC}"); o(f"v_lshlrev_b32 v{vT[3]}, 11, v{vT[3]}"); o(f"v_lshl_add_u32 v{vT[4]}, v{vG}, 3, v{vT[3]}"); o(f"v_lshl_add_u32 v{vT[3]}, v{vG}, 4, v{vT[3]}")
o(f"v_lshlrev_b32 v{vT[5]}, 16, v{vG}"); o(f"v_lshl_add_u32 v{vT[5]}, v{vC}, 4, v{vT[5]}")
o(f"s_lshl_b32 s{sT1}, s{sW}, 8"); o(f"s_lshl_b32 s{sT0}, s{sW}, 20"); o(f"s_lshl_b32 s{sT2}, s{sH}, 8"); o(f"s_add_u32 s{sT0}, s{sT0}, s{sT2}")
o("s_waitcnt lgkmcnt(0)")
stamp()
mksrd(SWQ, 42, 0x800000); mksrd(SX, 36, 16384)
WT = [VB, XT, XT+32, XT+64]
for t in range(4):
    if t == 1:
        for tt in range(4): o(f"buffer_load_dwordx4 {vr(Q0+4*tt,4)}, v{vT[3]}, {srd(SX)}, s{sT1} offen offset:{tt*64}")
    for i in range(8):
        o(f"buffer_load_dwordx4 {vr(WT[t]+i*4,4)}, v{vT[5]}, {srd(SWQ)}, s{sT0} offen {WQNT}")
        o(f"s_add_u32 s{sT0}, s{sT0}, {hex(0x2000 if i < 7 else 0x40000-7*0x2000)}")
o(f"s_lshl_b32 s{sT0}, s91, 20"); o(f"s_lshl_b32 s{sT1}, s91, 17")
mksrd(SAK, 38, 0x100000, sT0)
o(f"v_and_b32 v{vT[0]}, 3, v{vC}"); o(f"v_lshrrev_b32 v{vT[1]}, 2, v{vC}"); o(f"v_lshl_add_u32 v{vT[0]}, v{vT[0]}, 2, v{vT[1]}")
o(f"v_lshlrev_b32 v{vT[0]}, 8, v{vT[0]}"); o(f"v_lshl_add_u32 v{vOK}, v{vG}, 4, v{vT[0]}")
o(f"v_lshlrev_b32 v{vOV}, 4, v{vLANE}")
o(f"s_lshl_b32 s{sOFF}, s{sW}, 13"); setoff(None, 0)
loadK(SAK)
mksrd(SAV, 40, 0x100000, sT0); mksrd(SBK, 48, 0x20000, sT1); mksrd(SBV, 50, 0x20000, sT1)
mksrd(SWS, 62, WS_BYTES); mksrd(SGW, 56, 2048)
o(f"s_cmp_lt_u32 s{sW}, 4"); o(f"s_cselect_b32 s{sT2}, s44, s54"); o(f"s_cselect_b32 s{sT3}, s45, s55")
mksrd(SWO, sT2, 0x800000); mksrd(SWQB, 52, 0x800000)
mksrd(SDBG, 60, 256); mksrd(SOUT, 58, 16384)
o(f"s_mov_b32 s{sSEL0}, 0x05040100"); o(f"s_mov_b32 s{sSEL1}, 0x07060302")
o(f"s_mov_b32 s{sSCALE}, 0x3db504f3"); o(f"s_mov_b32 s{sLOG2E}, 0x3fb8aa3b"); o(f"s_mov_b32 s{sSPIN}, {opts['SPIN']}")
o(f"s_mov_b32 s{sKN}, 0"); o(f"s_mov_b32 s{sBD}, 0"); o(f"s_mov_b32 s{sCNT}, 0"); o(f"s_add_u32 s50, s{sW}, {NSTAT*8-8}")
c("---- sentinel clears of this WG's own outboxes; zero LDS counters")
for i in range(4): o(f"v_mov_b32 v{S0+i}, -1")
for i in range(4): o(f"v_mov_b32 v{S0+4+i}, 0")
o(f"ds_write_b128 v{S0+4}, {vr(S0+4,4)} offset:{CNT}")
o(f"s_lshl_b32 s{sT0}, s91, 3"); o(f"s_add_u32 s{sT0}, s{sT0}, s{sW}"); o(f"s_lshl_b32 s{sT0}, s{sT0}, 9"); o(f"s_add_u32 s{sT0}, s{sT0}, {hex(PI)}")
o(f"s_and_b32 s{sT1}, s91, 0xf8"); o(f"s_add_u32 s{sT1}, s{sT1}, s{sW}"); o(f"s_lshl_b32 s{sT1}, s{sT1}, 3"); o(f"s_and_b32 s{sT2}, s91, 7"); o(f"s_add_u32 s{sT1}, s{sT1}, s{sT2}")
o(f"s_lshl_b32 s{sT1}, s{sT1}, 9"); o(f"s_add_u32 s{sT1}, s{sT1}, {hex(BPO-512)}")
o(f"v_mov_b32 v{vT[0]}, s{sT0}"); o(f"v_mov_b32 v{vT[1]}, s{sT1}"); o(f"v_cmp_gt_u32 vcc, 32, v{vLANE}"); o("s_nop 1")
o(f"v_cndmask_b32 v{vT[0]}, v{vT[1]}, v{vT[0]}, vcc"); o(f"v_add_u32 v{vT[0]}, v{vT[0]}, v{vOV}")
o(f"buffer_store_dwordx4 {vr(S0,4)}, v{vT[0]}, {srd(SWS)}, 0 offen sc1")
o(f"s_lshr_b32 s{sT0}, s{sW}, 2"); o(f"s_lshl_b32 s{sT2}, s{sH}, 1"); o(f"s_add_u32 s{sT0}, s{sT0}, s{sT2}"); o(f"s_lshl_b32 s{sT0}, s{sT0}, 3"); o(f"s_add_u32 s{sT0}, s{sT0}, s{sB}")
o(f"s_lshl_b32 s{sT0}, s{sT0}, 8"); o(f"s_and_b32 s{sT2}, s{sW}, 3"); o(f"s_lshl_b32 s{sT2}, s{sT2}, 6"); o(f"s_add_u32 s{sT0}, s{sT0}, s{sT2}"); o(f"s_add_u32 s{sT0}, s{sT0}, {hex(OI)}")
o(f"s_sub_u32 s{sT1}, s{sT1}, {hex(BPO-512)}"); o(f"s_lshr_b32 s{sT1}, s{sT1}, 5"); o(f"s_add_u32 s{sT1}, s{sT1}, {hex(BPML)}")
o(f"v_add_u32 v{vT[0]}, s{sT0}, v{vOV}"); o(f"v_mov_b32 v{vT[1]}, s{sT1}"); o(f"v_mov_b32 v{vT[2]}, {hex(OOB)}")
o(f"v_cmp_eq_u32 vcc, 4, v{vLANE}"); o("s_nop 1"); o(f"v_cndmask_b32 v{vT[1]}, v{vT[2]}, v{vT[1]}, vcc")
o(f"v_cmp_gt_u32 vcc, 4, v{vLANE}"); o("s_nop 1"); o(f"v_cndmask_b32 v{vT[0]}, v{vT[1]}, v{vT[0]}, vcc")
o(f"buffer_store_dwordx4 {vr(S0,4)}, v{vT[0]}, {srd(SWS)}, 0 offen sc1")
c("persistent LDS bases")
o(f"s_mul_i32 s{sT0}, s{sW}, 4224"); o(f"v_mul_u32_u24 v{vT[6]}, 528, v{vC}"); o(f"v_add_u32 v{vT[6]}, s{sT0}, v{vT[6]}")
o(f"v_lshl_add_u32 v{vT[7]}, v{vG}, 7, v{vT[6]}")
o(f"v_lshl_add_u32 v{vT[6]}, v{vG}, 4, v{vT[6]}")
c("B wq piece offsets: rows 128b+16w+4g+i, cols h*128")
o(f"v_lshlrev_b32 v{vT[8]}, 15, v{vG}"); o(f"v_lshl_add_u32 v{vT[8]}, v{vC}, 4, v{vT[8]}")
o(f"s_lshl_b32 s{sT0}, s{sB}, 3"); o(f"s_add_u32 s{sT0}, s{sT0}, s{sW}"); o(f"s_lshl_b32 s{sT1}, s{sT0}, 5"); o(f"s_lshl_b32 s{sT0}, s{sT0}, 17")
o(f"s_lshl_b32 s{sT2}, s{sH}, 8"); o(f"s_add_u32 s{sT0}, s{sT0}, s{sT2}")
c("---- q_A: 4 tiles")
o("s_waitcnt vmcnt(34)")
stamp()
pv(WT[0], Q0, first=True)
loadV(SAV)
o("s_waitcnt vmcnt(34)")
pv(WT[1], Q0+4)
for i in range(4):
    o(f"buffer_load_dwordx4 {vr(XT+i*4,4)}, v{vT[8]}, {srd(SWQB)}, s{sT0} offen {NT}")
    if i < 3: o(f"s_add_u32 s{sT0}, s{sT0}, 0x2000")
o(f"buffer_load_dwordx2 {vr(XT+16,2)}, v{vT[4]}, {srd(SX)}, s{sT1} offen")
o("s_waitcnt vmcnt(31)")
pv(WT[2], Q0+8)
o("s_waitcnt vmcnt(23)")
pv(WT[3], Q0+12)
o(f"s_lshl_b32 s{sT0}, s{sW}, 9"); o(f"v_lshl_add_u32 v{vT[1]}, v{vG}, 4, s{sT0}")
o(f"s_lshl_b32 s{sT0}, 0x00010001, s{sB}"); o(f"s_mov_b32 exec_lo, s{sT0}"); o(f"s_mov_b32 exec_hi, s{sT0}")
o("s_nop 4")
for e in range(8): o(f"ds_write_b128 v{vT[1]}, {vr(ACC+e*4,4)} offset:{QA+e*64}")
o("s_mov_b64 exec, -1")
o(f"v_and_b32 v{vT[1]}, 3, v{vLANE}"); o(f"v_lshlrev_b32 v{vT[1]}, 7, v{vT[1]}"); o(f"v_lshrrev_b32 v{vT[2]}, 2, v{vLANE}"); o(f"v_lshl_add_u32 v{vT[1]}, v{vT[2]}, 2, v{vT[1]}")
o(f"v_add_u32 v{vT[1]}, {QA}, v{vT[1]}"); o(f"v_add_u32 v{vT[2]}, 64, v{vT[1]}"); o(f"v_lshlrev_b32 v{vT[3]}, 2, v{vLANE}"); o(f"v_lshlrev_b32 v{vT[8]}, 4, v{vG}")
o("s_waitcnt lgkmcnt(0)"); o("s_barrier")
stamp()
for k in range(4):
    o(f"ds_read2st64_b32 {vr(Q0+2*k,2)}, v{vT[1]} offset0:{4*k} offset1:{4*k+2}")
    o(f"ds_read2st64_b32 {vr(Q0+8+2*k,2)}, v{vT[2]} offset0:{4*k} offset1:{4*k+2}")
initsm()
o(f"s_add_u32 s{sT0}, s{sW}, 8"); o(f"s_lshl_b32 s{sOFF}, s{sT0}, 13"); setoff(None, 0)
o("s_waitcnt lgkmcnt(0)")
for st in (4, 2, 1):
    for k in range(st):
        o(f"v_add_f32 v{Q0+k}, v{Q0+k}, v{Q0+st+k}"); o(f"v_add_f32 v{Q0+8+k}, v{Q0+8+k}, v{Q0+8+st+k}")
o(f"v_cvt_pk_bf16_f32 v{Q0}, v{Q0}, v{Q0+8}")
o(f"ds_write_b32 v{vT[3]}, v{Q0} offset:{QS}")
loadQ(vT[8])
stamp()
c("---- main loop over A tiles")
lab("L_A")
tile(lambda: sel_load(loadK, SAK, SBK), lambda: sel_load(loadV, SAV, SBV))
o(f"s_cmp_lt_u32 s{sCNT}, {NSTAT-1}"); o("s_cbranch_scc1 L_extra")
o(f"s_cmp_eq_u32 s{sKN}, 1"); o("s_cbranch_scc1 L_B")
lab("L_A2")
o(f"s_cmp_eq_u32 s{sKN}, 2"); o("s_cbranch_scc1 L_last")
lab("L_A3")
decide_dyn(False)
o("s_branch L_A")
c("---- extras in the static phase")
lab("L_extra")
o(f"s_cmp_eq_u32 s{sCNT}, 0"); o("s_cbranch_scc1 L_E0")
o(f"s_cmp_eq_u32 s{sCNT}, {NSTAT-4}"); o("s_cbranch_scc1 L_E2")
o(f"s_cmp_eq_u32 s{sCNT}, {NSTAT-3}"); o("s_cbranch_scc1 L_E3")
o(f"s_cmp_eq_u32 s{sCNT}, {NSTAT-2}"); o("s_cbranch_scc1 L_E4")
lab("L_Eret")
o(f"s_add_u32 s{sCNT}, s{sCNT}, 1"); o(f"s_add_u32 s{sOFF}, s{sOFF}, 0x10000"); setoff(None, 0); o("s_branch L_A")
lab("L_E0")
c("q_B partial (16 rows per wave)")
QB = XT + 32
def perms16(e):
    w_, hb = e >> 1, e & 1
    for u in range(2): o(f"v_perm_b32 v{VT+(e&3)*2+u}, v{XT+(2*u+1)*4+w_}, v{XT+(2*u)*4+w_}, s{sSEL1 if hb else sSEL0}")
perms16(0)
for e in range(8):
    if e < 7: perms16(e+1)
    else: o("s_nop 1")
    o(f"v_mfma_f32_16x16x16_bf16 {vr(QB+e*4,4)}, {vr(VT+(e&3)*2,2)}, {vr(XT+16,2)}, 0")
o("s_mov_b32 exec_lo, 0x00ff00ff"); o("s_mov_b32 exec_hi, 0x00ff00ff"); o("s_nop 7")
for e in range(8):
    for r in range(4): o(f"ds_write_b32 v{vT[7]}, v{QB+e*4+r} offset:{QRED+(8*r+e)*4}")
o("s_mov_b64 exec, -1"); o("s_waitcnt lgkmcnt(0)")
lds_ctr("addr", CNT, sT0)
o(f"s_cmp_lg_u32 s{sT0}, 7"); o("s_cbranch_scc1 L_Eret")
o(f"v_lshrrev_b32 v{vT[0]}, 3, v{vLANE}"); o(f"v_mul_u32_u24 v{vT[0]}, 528, v{vT[0]}"); o(f"v_and_b32 v{vT[1]}, 7, v{vLANE}"); o(f"v_lshl_add_u32 v{vT[0]}, v{vT[1]}, 6, v{vT[0]}")
RA = XT + 16
for half in range(2):
    for w in range(4):
        for k in range(4): o(f"ds_read_b128 {vr(QB+w*16+k*4,4)}, v{vT[0]} offset:{QRED+(half*4+w)*4224+k*16}")
    o("s_waitcnt lgkmcnt(0)")
    for w in range(4):
        for k in range(16):
            if half == 0 and w == 0: continue
            if half == 0 and w == 1: o(f"v_add_f32 v{RA+k}, v{QB+k}, v{QB+16+k}")
            else: o(f"v_add_f32 v{RA+k}, v{RA+k}, v{QB+w*16+k}")
o(f"s_lshl_b32 s{sT0}, s{sH}, 3"); o(f"s_add_u32 s{sT0}, s{sT0}, s{sB}"); o(f"s_lshl_b32 s{sT0}, s{sT0}, 12")
o(f"v_lshlrev_b32 v{vT[1]}, 6, v{vLANE}")
for k in range(4): o(f"buffer_store_dwordx4 {vr(RA+4*k,4)}, v{vT[1]}, {srd(SWS)}, s{sT0} offen offset:{k*16} sc1")
o(f"v_mov_b32 v{vT[2]}, {hex(OOB)}"); o(f"v_mov_b32 v{vT[3]}, s91"); o(f"v_cmp_eq_u32 vcc, 0, v{vLANE}"); o(f"v_mov_b32 v{vT[4]}, 1")
o(f"v_cndmask_b32 v{vT[2]}, v{vT[2]}, v{vT[3]}, vcc")
o("s_waitcnt vmcnt(0)")
o(f"buffer_store_byte v{vT[4]}, v{vT[2]}, {srd(SDBG)}, 0 offen sc1")
o("s_branch L_Eret")
lab("L_E2")
c("issue flag load + gate inputs")
GX = XT + 16
o(f"v_lshlrev_b32 v{XT+49}, 2, v{vLANE}")
o(f"buffer_load_dword v{XT+48}, v{XT+49}, {srd(SDBG)}, 0 offen sc1")
o(f"v_lshlrev_b32 v{vT[4]}, 5, v{vLANE}"); o(f"s_lshl_b32 s{sT1}, s{sW}, 11")
o(f"buffer_load_dwordx4 {vr(GX,4)}, v{vT[4]}, {srd(SX)}, s{sT1} offen"); o(f"buffer_load_dwordx4 {vr(GX+4,4)}, v{vT[4]}, {srd(SX)}, s{sT1} offen offset:16")
o(f"buffer_load_dwordx4 {vr(GX+8,4)}, v{vT[4]}, {srd(SGW)}, 0 offen"); o(f"buffer_load_dwordx4 {vr(GX+12,4)}, v{vT[4]}, {srd(SGW)}, 0 offen offset:16")
o("s_branch L_Eret")
lab("L_E3")
stamp()
o(f"s_mov_b32 s{sT0}, 0x01010101")
lab("L_poll0")
o(f"v_cmp_ne_u32 vcc, s{sT0}, v{XT+48}"); o("s_cbranch_vccz L_poll0_done")
o(f"s_sub_u32 s{sSPIN}, s{sSPIN}, 1"); o("s_cbranch_scc1 L_poll0_done"); o("s_sleep 8")
o(f"buffer_load_dword v{XT+48}, v{XT+49}, {srd(SDBG)}, 0 offen sc1"); o("s_waitcnt vmcnt(0)"); o("s_branch L_poll0")
lab("L_poll0_done")
stamp()
o(f"v_lshrrev_b32 v{vT[0]}, 5, v{vLANE}"); o(f"v_lshlrev_b32 v{vT[0]}, 12, v{vT[0]}"); o(f"v_and_b32 v{vT[1]}, 31, v{vLANE}"); o(f"v_lshl_add_u32 v{vT[0]}, v{vT[1]}, 4, v{vT[0]}")
o(f"s_and_b32 s{sT0}, s{sH}, 0x18"); o(f"s_add_u32 s{sT0}, s{sT0}, s{sW}"); o(f"s_lshl_b32 s{sT0}, s{sT0}, 15"); o(f"s_lshl_b32 s{sT1}, s{sB}, 9"); o(f"s_add_u32 s{sT0}, s{sT0}, s{sT1}")
for k in range(4):
    o(f"buffer_load_dwordx4 {vr(XT+4*k,4)}, v{vT[0]}, {srd(SWS)}, s{sT0} offen sc1")
    if k < 3: o(f"s_add_u32 s{sT0}, s{sT0}, 0x2000")
c("gate for batch w: sigmoid(bf16(sum(bf16(x*gw))))")
for i in range(8):
    a, b_ = GX+16+2*i, GX+17+2*i
    o(f"v_lshlrev_b32 v{vT[0]}, 16, v{GX+i}"); o(f"v_lshlrev_b32 v{vT[1]}, 16, v{GX+8+i}"); o(f"v_mul_f32 v{a}, v{vT[0]}, v{vT[1]}")
    o(f"v_and_b32 v{vT[0]}, 0xffff0000, v{GX+i}"); o(f"v_and_b32 v{vT[1]}, 0xffff0000, v{GX+8+i}"); o(f"v_mul_f32 v{b_}, v{vT[0]}, v{vT[1]}")
    rnd2(a, b_, vT[2])
    o(f"v_add_f32 v{a}, v{a}, v{b_}")
    if i: o(f"v_add_f32 v{GX+16}, v{GX+16}, v{a}")
gs = GX + 16
for r in (8, 4, 2, 1):
    o("s_nop 1"); o(f"v_add_f32_dpp v{gs}, v{gs}, v{gs} row_ror:{r} row_mask:0xf bank_mask:0xf")
xmax(gs, vT[0], "v_add_f32")
rnd2(gs, gs+1, vT[2])
o(f"v_mul_f32 v{gs}, s{sLOG2E}, v{gs}"); o(f"v_exp_f32 v{gs}, -v{gs}"); o("s_nop 0"); o(f"v_add_f32 v{gs}, 1.0, v{gs}")
o(f"v_rcp_f32 v{gs}, v{gs}"); o("s_nop 0"); rnd2(gs, gs+1, vT[2])
o(f"v_sub_f32 v{gs+1}, 1.0, v{gs}"); rnd2(gs+1, gs+2, vT[2])
o(f"s_lshl_b32 s{sT0}, s{sW}, 3"); o(f"v_mov_b32 v{vT[0]}, s{sT0}"); o(f"ds_write_b64 v{vT[0]}, {vr(gs,2)} offset:{GATE}")
o("s_branch L_Eret")
lab("L_E4")
c("reduce gathered q_B partials for head w -> LDS")
for k in range(4): o(f"v_add_f32 v{XT+k}, v{XT+k}, v{XT+4+k}"); o(f"v_add_f32 v{XT+8+k}, v{XT+8+k}, v{XT+12+k}")
for k in range(4): o(f"v_add_f32 v{XT+k}, v{XT+k}, v{XT+8+k}")
for k in range(4): o(f"v_mov_b32 v{XT+4+k}, v{XT+k}")
o("s_nop 0")
for k in range(4): o(f"v_permlane32_swap_b32 v{XT+4+k}, v{XT+k}")
o("s_nop 0")
for k in range(4): o(f"v_add_f32 v{XT+k}, v{XT+k}, v{XT+4+k}")
o(f"v_cvt_pk_bf16_f32 v{XT}, v{XT}, v{XT+1}"); o(f"v_cvt_pk_bf16_f32 v{XT+1}, v{XT+2}, v{XT+3}")
o(f"s_lshl_b32 s{sT0}, s{sW}, 8"); o(f"v_and_b32 v{vT[1]}, 31, v{vLANE}"); o(f"v_lshl_add_u32 v{vT[1]}, v{vT[1]}, 3, s{sT0}")
o(f"ds_write_b64 v{vT[1]}, {vr(XT,2)} offset:{QS+256}")
o("s_waitcnt lgkmcnt(0)")
lds_ctr("add", CNT+4, None)
o(f"s_add_u32 s{sCNT}, s{sCNT}, 1")
o("s_branch L_A3")
c("---- branch B: 2 tiles per wave")
lab("L_B")
stamp()
SV = XT + 64
o(f"s_mov_b32 s{sBD}, 1")
o(f"v_and_b32 v{vT[8]}, 7, v{vC}"); o(f"v_lshlrev_b32 v{vT[8]}, 8, v{vT[8]}"); o(f"v_lshl_add_u32 v{vT[8]}, v{vG}, 4, v{vT[8]}"); o(f"v_add_u32 v{vT[8]}, 256, v{vT[8]}")
for i in range(32): o(f"v_mov_b32 v{SV+i}, v{ACC+i}")
o(f"v_mov_b32 v{SV-2}, v{vM}"); o(f"v_mov_b32 v{SV-1}, v{vL}")
loadQ(vT[8]); initsm()
tile(lambda: (setoff(None, 0x10000), loadK(SBK)), lambda: loadV(SBV))
decide_dyn(True)
tile(lambda: loadK(SAK), lambda: loadV(SAV))
c("B epilogue: last arriver combines across waves and publishes")
xmax(vL, vT[0], "v_add_f32")
o(f"s_lshl_b32 s{sT0}, s{sW}, 6"); o(f"v_lshlrev_b32 v{vT[1]}, 3, v{vC}"); o(f"v_add_u32 v{vT[1]}, s{sT0}, v{vT[1]}")
o("s_mov_b32 exec_lo, 0x00ff00ff"); o("s_mov_b32 exec_hi, 0x00ff00ff"); o("s_nop 1")
o(f"ds_write_b64 v{vT[1]}, {vr(vM,2)} offset:{BML}")
for e in range(8): o(f"ds_write_b128 v{vT[6]}, {vr(ACC+e*4,4)} offset:{BCOMB+e*64}")
o("s_mov_b64 exec, -1"); o("s_waitcnt lgkmcnt(0)")
lds_ctr("addr", CNT+8, sT0)
o(f"s_cmp_lg_u32 s{sT0}, 7"); o("s_cbranch_scc1 L_Bdone")
o(f"v_lshlrev_b32 v{vT[2]}, 3, v{vLANE}"); o(f"v_add_u32 v{vT[1]}, {BCOMB}, v{vT[2]}"); o(f"v_mov_b32 v{vT[3]}, {BML}")
o(f"v_mov_b32 v{vT[4]}, {hex(OOB)}"); o(f"v_cmp_eq_u32 vcc, 0, v{vLANE}"); o("s_nop 1"); o(f"v_cndmask_b32 v{vT[4]}, v{vT[4]}, 0, vcc")
o(f"s_and_b32 s{sT1}, s91, 0xf8"); o(f"s_lshl_b32 s{sT1}, s{sT1}, 3"); o(f"s_and_b32 s{sT2}, s91, 7"); o(f"s_add_u32 s{sT1}, s{sT1}, s{sT2}")
o(f"s_lshl_b32 s{sT0}, s{sT1}, 9"); o(f"s_add_u32 s{sT0}, s{sT0}, {hex(BPO)}"); o(f"s_lshl_b32 s{sT1}, s{sT1}, 4"); o(f"s_add_u32 s{sT1}, s{sT1}, {hex(BPML)}")
o(f"s_mov_b32 s{sT2}, 8")
lab("L_Bc")
combine(vT[1], 4224, vT[3], 64, True)
o(f"buffer_store_dwordx2 {vr(XT,2)}, v{vT[2]}, {srd(SWS)}, s{sT0} offen sc1")
o(f"buffer_store_dwordx2 {vr(vM,2)}, v{vT[4]}, {srd(SWS)}, s{sT1} offen sc1")
o(f"v_add_u32 v{vT[1]}, 528, v{vT[1]}"); o(f"v_add_u32 v{vT[3]}, 8, v{vT[3]}")
o(f"s_add_u32 s{sT0}, s{sT0}, 0x1000"); o(f"s_add_u32 s{sT1}, s{sT1}, 0x80")
o(f"s_sub_u32 s{sT2}, s{sT2}, 1"); o(f"s_cmp_lg_u32 s{sT2}, 0"); o("s_cbranch_scc1 L_Bc")
lab("L_Bdone")
o(f"v_lshlrev_b32 v{vT[8]}, 4, v{vG}")
for i in range(32): o(f"v_mov_b32 v{ACC+i}, v{SV+i}")
o(f"v_mov_b32 v{vM}, v{SV-2}"); o(f"v_mov_b32 v{vL}, v{SV-1}")
loadQ(vT[8])
stamp()
o("s_branch L_A2")
lab("L_last")
def last_nextK():
    o(f"s_lshl_b32 s{sT0}, s{sH}, 7"); o(f"s_and_b32 s{sT1}, s{sW}, 3"); o(f"s_lshl_b32 s{sT1}, s{sT1}, 5"); o(f"s_add_u32 s{sT0}, s{sT0}, s{sT1}")
    o(f"s_lshl_b32 s{sT0}, s{sT0}, 11"); o(f"s_lshl_b32 s{sT1}, s{sB}, 8"); o(f"s_add_u32 s{sT0}, s{sT0}, s{sT1}")
    o(f"v_lshlrev_b32 v{vT[9]}, 14, v{vG}"); o(f"v_lshl_add_u32 v{vT[9]}, v{vC}, 4, v{vT[9]}")
    o(f"s_lshl_b32 s{sT2}, s91, 3"); o(f"s_add_u32 s{sT2}, s{sT2}, s{sW}"); o(f"s_lshl_b32 s{sT3}, s{sT2}, 4"); o(f"s_add_u32 s{sT3}, s{sT3}, {hex(BPML)}")
    o(f"s_lshl_b32 s{sT2}, s{sT2}, 9"); o(f"s_add_u32 s{sT2}, s{sT2}, {hex(BPO)}")
    o(f"v_lshlrev_b32 v{XT+44}, 3, v{vLANE}"); o(f"v_mov_b32 v{XT+45}, 0")
    o(f"buffer_load_dwordx2 {vr(XT+40,2)}, v{XT+44}, {srd(SWS)}, s{sT2} offen sc1")
    o(f"buffer_load_dwordx2 {vr(XT+42,2)}, v{XT+45}, {srd(SWS)}, s{sT3} offen sc1")
    for i in range(8):
        o(f"buffer_load_dwordx4 {vr(KB+i*4,4)}, v{vT[9]}, {srd(SWO)}, s{sT0} offen offset:{(i&1)*2048} {NT}")
        if i & 1 and i < 7: o(f"s_add_u32 s{sT0}, s{sT0}, 0x1000")
tile(last_nextK, lambda: None, wK=8, wV=8)
stamp()
if TS:
    o(f"s_lshl_b32 s{sT0}, s91, 3"); o(f"s_add_u32 s{sT0}, s{sT0}, s{sW}"); o(f"s_lshl_b32 s{sT0}, s{sT0}, 2"); o(f"s_add_u32 s{sT0}, s{sT0}, {hex(TSO+0x4000)}")
    o(f"v_mov_b32 v{vT[0]}, s2"); o(f"v_mov_b32 v{vT[1]}, 0"); o(f"buffer_store_dword v{vT[0]}, v{vT[1]}, {srd(SWS)}, s{sT0} offen")
c("---- tail: combine A (wave 0) and B splits (wave 1)")
lab("L_pollB")
o(f"v_cmp_eq_u32 vcc, -1, v{XT+40}"); o(f"v_cmp_eq_u32 s[2:3], -1, v{XT+41}"); o("s_or_b64 vcc, vcc, s[2:3]")
o(f"v_cmp_eq_u32 s[2:3], -1, v{XT+42}"); o("s_or_b64 vcc, vcc, s[2:3]"); o(f"v_cmp_eq_u32 s[2:3], -1, v{XT+43}"); o("s_or_b64 vcc, vcc, s[2:3]")
o("s_cbranch_scc0 L_pollB_done")
o(f"s_sub_u32 s{sSPIN}, s{sSPIN}, 1"); o("s_cbranch_scc1 L_pollB_done"); o("s_sleep 1")
o(f"buffer_load_dwordx2 {vr(XT+40,2)}, v{XT+44}, {srd(SWS)}, s{sT2} offen sc1")
o(f"buffer_load_dwordx2 {vr(XT+42,2)}, v{XT+45}, {srd(SWS)}, s{sT3} offen sc1")
o("s_waitcnt vmcnt(0)"); o("s_branch L_pollB")
lab("L_pollB_done")
xmax(vL, vT[0], "v_add_f32")
o(f"s_lshl_b32 s{sT0}, s{sW}, 9"); o(f"v_lshl_add_u32 v{vT[1]}, v{vG}, 4, s{sT0}"); o(f"v_add_u32 v{vT[2]}, s{sT0}, v{XT+44}")
o(f"s_lshl_b32 s{sT0}, s{sW}, 3"); o(f"v_mov_b32 v{vT[3]}, s{sT0}")
o(f"ds_write_b64 v{vT[2]}, {vr(XT+40,2)} offset:{ACOMB+B2D}"); o(f"ds_write_b64 v{vT[3]}, {vr(XT+42,2)} offset:{AML+B2D}")
o(f"ds_write_b64 v{vT[3]}, {vr(vM,2)} offset:{AML}")
o("s_mov_b32 exec_lo, 0x00010001"); o("s_mov_b32 exec_hi, 0x00010001"); o("s_nop 1")
for e in range(8): o(f"ds_write_b128 v{vT[1]}, {vr(ACC+e*4,4)} offset:{ACOMB+e*64}")
o("s_mov_b64 exec, -1")
o(f"v_and_b32 v{vT[4]}, 7, v{vC}"); o(f"s_lshr_b32 s{sT1}, s{sW}, 2"); o(f"s_lshl_b32 s{sT0}, s{sT1}, 2"); o(f"v_lshl_add_u32 v{vT[5]}, v{vT[4]}, 3, s{sT0}")
o(f"ds_read_b32 v{vAL}, v{vT[5]} offset:{GATE}")
o("s_waitcnt lgkmcnt(0)"); o("s_barrier")
o(f"s_cmp_gt_u32 s{sW}, 1"); o("s_cbranch_scc1 L_nocomb")
o(f"s_mul_i32 s{sT0}, s{sW}, {B2D}"); o(f"s_add_u32 s{sT2}, s{sT0}, {AML}"); o(f"s_add_u32 s{sT0}, s{sT0}, {ACOMB}")
o(f"v_and_b32 v{vT[1]}, 3, v{vLANE}"); o(f"v_lshlrev_b32 v{vT[1]}, 7, v{vT[1]}"); o(f"v_lshrrev_b32 v{vT[2]}, 2, v{vLANE}"); o(f"v_lshl_add_u32 v{vT[1]}, v{vT[2]}, 2, v{vT[1]}")
o(f"v_add_u32 v{vT[1]}, s{sT0}, v{vT[1]}"); o(f"v_mov_b32 v{vT[3]}, s{sT2}")
combine(vT[1], 512, vT[3], 8, False)
o(f"v_rcp_f32 v{vL}, v{vL}"); o("s_nop 0"); o(f"v_mul_f32 v{XT}, v{XT}, v{vL}"); o(f"v_mul_f32 v{XT+1}, v{XT+1}, v{vL}")
o(f"v_cvt_pk_bf16_f32 v{XT}, v{XT}, v{XT+1}")
o(f"s_lshl_b32 s{sT0}, s{sH}, 1"); o(f"s_add_u32 s{sT0}, s{sT0}, s{sW}"); o(f"s_lshl_b32 s{sT0}, s{sT0}, 3"); o(f"s_add_u32 s{sT0}, s{sT0}, s{sB}"); o(f"s_lshl_b32 s{sT0}, s{sT0}, 8"); o(f"s_add_u32 s{sT0}, s{sT0}, {hex(OI)}")
o(f"v_lshlrev_b32 v{vT[2]}, 2, v{vLANE}")
o(f"buffer_store_dword v{XT}, v{vT[2]}, {srd(SWS)}, s{sT0} offen sc1")
lab("L_nocomb")
stamp()
c("poll o operand: OI[(h*2+mat)*8 + (c&7)]*256 + (w&3)*64 + g*16")
o(f"s_lshr_b32 s{sT1}, s{sW}, 2"); o(f"s_lshl_b32 s{sT0}, s{sH}, 1"); o(f"s_add_u32 s{sT0}, s{sT0}, s{sT1}"); o(f"s_lshl_b32 s{sT0}, s{sT0}, 11")
o(f"s_and_b32 s{sT1}, s{sW}, 3"); o(f"s_lshl_b32 s{sT1}, s{sT1}, 6"); o(f"s_add_u32 s{sT0}, s{sT0}, s{sT1}"); o(f"s_add_u32 s{sT0}, s{sT0}, {hex(OI)}")
o(f"v_lshlrev_b32 v{vT[4]}, 8, v{vT[4]}"); o(f"v_lshl_add_u32 v{vT[4]}, v{vG}, 4, v{vT[4]}")
lab("L_pollO")
o(f"buffer_load_dwordx4 {vr(P0,4)}, v{vT[4]}, {srd(SWS)}, s{sT0} offen sc1"); o("s_waitcnt vmcnt(0)")
o(f"v_max3_u32 v{vT[0]}, v{P0}, v{P0+1}, v{P0+2}"); o(f"v_max_u32 v{vT[0]}, v{vT[0]}, v{P0+3}"); o(f"v_cmp_eq_u32 vcc, -1, v{vT[0]}")
spin_tail("L_pollO", "L_pollO_done")
stamp()
pv(KB, P0, first=True)
o("s_nop 7")
for i in range(16): o(f"v_pk_mul_f32 {vr(ACC+2*i,2)}, {vr(ACC+2*i,2)}, {vr(vAL,2)} op_sel_hi:[1,0]")
o("s_mov_b32 exec_lo, 0x00ff00ff"); o("s_mov_b32 exec_hi, 0x00ff00ff"); o("s_nop 1")
for e in range(8): o(f"ds_write_b128 v{vT[6]}, {vr(ACC+e*4,4)} offset:{ORED+e*64}")
o("s_mov_b64 exec, -1")
o(f"s_mul_i32 s{sT0}, s{sW}, 528"); o(f"s_add_u32 s{sT0}, s{sT0}, {ORED}")
o(f"v_and_b32 v{vT[1]}, 3, v{vLANE}"); o(f"v_lshlrev_b32 v{vT[1]}, 7, v{vT[1]}"); o(f"v_lshrrev_b32 v{vT[2]}, 2, v{vLANE}"); o(f"v_lshl_add_u32 v{vT[1]}, v{vT[2]}, 2, v{vT[1]}")
o(f"v_add_u32 v{vT[1]}, s{sT0}, v{vT[1]}")
for w in range(1, 8): o(f"v_add_u32 v{XT+16+w}, {w*4224}, v{vT[1]}")
o("s_waitcnt lgkmcnt(0)"); o("s_barrier")
for w in range(8): o(f"ds_read2_b32 {vr(XT+2*w,2)}, v{vT[1] if w==0 else XT+16+w} offset0:0 offset1:16")
o(f"s_lshl_b32 s{sT0}, s91, 3"); o(f"s_add_u32 s{sT0}, s{sT0}, s{sW}"); o(f"s_lshl_b32 s{sT0}, s{sT0}, 9"); o(f"s_add_u32 s{sT0}, s{sT0}, {hex(PI)}")
o("s_waitcnt lgkmcnt(0)")
for st in (8, 4, 2):
    for k in range(st): o(f"v_add_f32 v{XT+k}, v{XT+k}, v{XT+st+k}")
o(f"buffer_store_dwordx2 {vr(XT,2)}, v{XT+44}, {srd(SWS)}, s{sT0} offen sc1")
o(f"s_cmp_lg_u32 s{sW}, 0"); o("s_cbranch_scc1 L_end")
stamp()
c("final reduce: PI[(b*32+h')*8 + (h>>2)]*512 + (h&3)*128 + (l&7)*16, h' = (l>>3)+8k")
o(f"s_lshl_b32 s{sT0}, s{sB}, 17"); o(f"s_lshl_b32 s{sT1}, s{sH}, 7"); o(f"s_add_u32 s{sT0}, s{sT0}, s{sT1}"); o(f"s_add_u32 s{sT0}, s{sT0}, {hex(PI)}")
o(f"s_add_u32 s{sT1}, s{sT0}, 0x8000"); o(f"s_add_u32 s{sT2}, s{sT0}, 0x10000"); o(f"s_add_u32 s{sT3}, s{sT0}, 0x18000")
o(f"v_lshrrev_b32 v{vT[1]}, 3, v{vLANE}"); o(f"v_lshlrev_b32 v{vT[1]}, 12, v{vT[1]}"); o(f"v_and_b32 v{vT[2]}, 7, v{vLANE}"); o(f"v_lshl_add_u32 v{vT[1]}, v{vT[2]}, 4, v{vT[1]}")
lab("L_pollP")
for k, sr in enumerate((sT0, sT1, sT2, sT3)): o(f"buffer_load_dwordx4 {vr(XT+4*k,4)}, v{vT[1]}, {srd(SWS)}, s{sr} offen sc1")
o("s_waitcnt vmcnt(0)")
o(f"v_max3_u32 v{vT[0]}, v{XT}, v{XT+1}, v{XT+2}")
for k in range(3, 15, 2): o(f"v_max3_u32 v{vT[0]}, v{vT[0]}, v{XT+k}, v{XT+k+1}")
o(f"v_max_u32 v{vT[0]}, v{vT[0]}, v{XT+15}"); o(f"v_cmp_eq_u32 vcc, -1, v{vT[0]}")
spin_tail("L_pollP", "L_pollP_done")
for st in (8, 4):
    for k in range(st): o(f"v_add_f32 v{XT+k}, v{XT+k}, v{XT+st+k}")
o("s_nop 1")
for k in range(4): o(f"v_add_f32_dpp v{XT+k}, v{XT+k}, v{XT+k} row_ror:8 row_mask:0xf bank_mask:0xf")
for sw in ("v_permlane32_swap_b32", "v_permlane16_swap_b32"):
    for k in range(4): o(f"v_mov_b32 v{XT+4+k}, v{XT+k}")
    o("s_nop 0")
    for k in range(4): o(f"{sw} v{XT+4+k}, v{XT+k}")
    o("s_nop 0")
    for k in range(4): o(f"v_add_f32 v{XT+k}, v{XT+k}, v{XT+4+k}")
o(f"v_cvt_pk_bf16_f32 v{XT}, v{XT}, v{XT+1}"); o(f"v_cvt_pk_bf16_f32 v{XT+1}, v{XT+2}, v{XT+3}")
o(f"s_lshr_b32 s{sT0}, s{sH}, 2"); o(f"s_lshl_b32 s{sT0}, s{sT0}, 11"); o(f"s_lshl_b32 s{sT1}, s{sB}, 8"); o(f"s_add_u32 s{sT0}, s{sT0}, s{sT1}")
o(f"s_and_b32 s{sT1}, s{sH}, 3"); o(f"s_lshl_b32 s{sT1}, s{sT1}, 6"); o(f"s_add_u32 s{sT0}, s{sT0}, s{sT1}")
o(f"v_mov_b32 v{vT[3]}, {hex(OOB)}"); o(f"v_cmp_gt_u32 vcc, 8, v{vLANE}"); o("s_nop 1"); o(f"v_cndmask_b32 v{vT[3]}, v{vT[3]}, v{XT+44}, vcc")
o(f"buffer_store_dwordx2 {vr(XT,2)}, v{vT[3]}, {srd(SOUT)}, s{sT0} offen")
if TS:
    stamp()
    o(f"s_lshl_b32 s{sT0}, s91, 6"); o(f"s_add_u32 s{sT0}, s{sT0}, {hex(TSO)}"); o(f"v_mov_b32 v{vT[1]}, 0")
    o("s_getreg_b32 s2, hwreg(HW_REG_XCC_ID)"); o(f"v_mov_b32 v{vT[0]}, s2")
    o(f"buffer_store_dword v{vT[0]}, v{vT[1]}, {srd(SWS)}, s{sT0} offen offset:60")
    for i in range(nstamp[0]):
        o(f"v_mov_b32 v{vT[0]}, s{TSR[i]}"); o(f"buffer_store_dword v{vT[0]}, v{vT[1]}, {srd(SWS)}, s{sT0} offen offset:{i*4}")
lab("L_end")
hdr = open("cdna_kernels/" + NAME + ".s.ref").read().split("\n")
out = []
for ln in hdr:
    if ln.startswith("; @launch"): out.append(f"; @launch grid=(256,1,1) block=(512,1,1) lds={LDS_BYTES}")
    elif ln.startswith(NAME + "_kernel:"):
        out.append(ln); out += L; break
    else: out.append(ln)
out.append("s_endpgm")
tail = hdr[hdr.index('.section .rodata,"a"'):]
out += [t for t in tail]
open(sys.argv[1], "w").write("\n".join(out) + "\n")
print("lines", len(L), "lds", LDS_BYTES, "stamps", nstamp[0])
```

```python
import sys
NAME = "gated_mix__mha_block_cached__gqa_block_cached__decode"
opts = dict(TS=0, SPIN=400000, NT="nt", WQNT="", NSTAT=5, DYN=0, BAR=0, REMAP=0, PRIO=0, D2=1, F=-1, KL=1, CW=1)
for a in sys.argv[2:]:
    k, v = a.split("="); opts[k] = int(v) if v.lstrip("-").isdigit() else v
TS = opts["TS"]; NT = opts["NT"]
L = []
def o(s): L.append("    " + s)
def lab(s): L.append(s + ":")
def c(s): L.append("    ; " + s)
SAK, SAV, SBK, SBV, SWQ, SWO, SX, SWS, SDBG, SOUT, SGW = 4, 8, 12, 16, 20, 24, 28, 32, 64, 68, 72
sH, sB, sW = 76, 77, 78
sT0, sT1, sT2, sT3 = 79, 80, 81, 82
sSEL0, sSEL1, sSCALE, sLOG2E, sOFF, sOFF2, sCNT, sSPIN = 83, 84, 85, 86, 87, 88, 89, 90
TSR = list(range(92,102))+[36,37,38,39]
def srd(r): return f"s[{r}:{r+3}]"
vLANE, vG, vC, vOK, vOV = 1, 2, 3, 4, 5
vT = list(range(6, 16))
vM, vL, vAL, vAL1 = 16, 17, 18, 19
S0, P0, Q0, ACC, VT, KB, VB, XT = 20, 28, 32, 48, 80, 96, 128, 160
def vr(b, n): return f"v[{b}:{b+n-1}]"
BML = 0; ACOMB = 512; AML = ACOMB + 4096
B2D = 4096 + 64; QS = ACOMB + 2 * B2D; GATE = QS + 2304
CNT = GATE + 64; QA = CNT + 64
QRED = BCOMB = ORED = QA + 4096; LDS_BYTES = QRED + 33792
assert QRED % 16 == 0
QP, BPO, BPML, OI, PI, TSO = 0, 0x100000, 0x200000, 0x210000, 0x300000, 0x400000
WS_BYTES = 0x410000
EPO = 0x280000
sEP = 52
OOB = 0x7ffffff0
nstamp = [0]
sTC = 51
uid = [0]
def U(p): uid[0] += 1; return f"L_{p}{uid[0]}"
def stamp():
    if not TS: return
    i = nstamp[0]; nstamp[0] += 1
    assert i < 14
    o("s_memrealtime s[2:3]"); o("s_waitcnt lgkmcnt(0)"); o(f"s_mov_b32 s{TSR[i]}, s2")
def mksrd(r, ptr, nbytes, offreg=None):
    if offreg is None:
        o(f"s_mov_b32 s{r}, s{ptr}"); o(f"s_and_b32 s{r+1}, s{ptr+1}, 0xffff")
    else:
        o(f"s_add_u32 s{r}, s{ptr}, s{offreg}"); o(f"s_addc_u32 s{r+1}, s{ptr+1}, 0"); o(f"s_and_b32 s{r+1}, s{r+1}, 0xffff")
    o(f"s_mov_b32 s{r+2}, {hex(nbytes)}"); o(f"s_mov_b32 s{r+3}, 0x00020000")
def loadK(sr, dst=KB):
    for t in range(2):
        for j in range(4):
            o(f"buffer_load_dwordx4 {vr(dst+t*16+j*4,4)}, v{vOK}, {srd(sr)}, s{sOFF if t==0 else sOFF2} offen offset:{j*64} {NT}")
def loadV(sr, dst=VB):
    for i in range(8):
        o(f"buffer_load_dwordx4 {vr(dst+i*4,4)}, v{vOV}, {srd(sr)}, s{sOFF if i<4 else sOFF2} offen offset:{(i&3)*1024} {NT}")
def pv(src, pb, first=False):
    def perms(e):
        w_, hb = e >> 1, e & 1
        for u in range(4):
            o(f"v_perm_b32 v{VT+(e&3)*4+u}, v{src+(2*u+1)*4+w_}, v{src+(2*u)*4+w_}, s{sSEL1 if hb else sSEL0}")
    perms(0)
    for e in range(8):
        if e + 1 < 8: perms(e + 1)
        else: o("s_nop 1")
        cc = "0" if first else vr(ACC+e*4, 4)
        o(f"v_mfma_f32_16x16x32_bf16 {vr(ACC+e*4,4)}, {vr(VT+(e&3)*4,4)}, {vr(pb,4)}, {cc}")
def xmax(v, t, op="v_max_f32"):
    for sw in ("v_permlane32_swap_b32", "v_permlane16_swap_b32"):
        o(f"v_mov_b32 v{t}, v{v}"); o("s_nop 1"); o(f"{sw} v{t}, v{v}"); o("s_nop 0"); o(f"{op} v{v}, v{t}, v{v}")
def rnd2(a, b, t):
    o(f"v_cvt_pk_bf16_f32 v{t}, v{a}, v{b}"); o(f"v_lshlrev_b32 v{a}, 16, v{t}"); o(f"v_and_b32 v{b}, 0xffff0000, v{t}")
def fair():
    l1, l2 = U("pl"), U("pd")
    o(f"s_add_u32 s{sTC}, s{sTC}, 1"); o(f"s_lshl_b32 s{sT0}, s{sW}, 2"); o(f"s_xor_b32 s{sT1}, s{sT0}, 16")
    o(f"v_mov_b32 v{vT[0]}, s{sT0}"); o(f"v_mov_b32 v{vT[1]}, s{sT1}"); o(f"v_mov_b32 v{vT[2]}, s{sTC}")
    o(f"ds_write_b32 v{vT[0]}, v{vT[2]} offset:{CNT+16}"); o(f"ds_read_b32 v{vT[1]}, v{vT[1]} offset:{CNT+16}")
    o("s_waitcnt lgkmcnt(0)"); o(f"v_readfirstlane_b32 s{sT0}, v{vT[1]}")
    o(f"s_cmp_gt_u32 s{sTC}, s{sT0}"); o(f"s_cbranch_scc1 {l1}"); o("s_setprio 1"); o(f"s_branch {l2}"); lab(l1); o("s_setprio 0"); lab(l2)
def tile(nextK, nextV, wK=8, wV=8, prio=True, ks=KB, vs=VB):
    if opts["BAR"]: o("s_barrier")
    o(f"s_waitcnt vmcnt({wK})")
    for j in range(4):
        for t in range(2):
            cc = "0" if j == 0 else vr(S0+t*4, 4)
            o(f"v_mfma_f32_16x16x32_bf16 {vr(S0+t*4,4)}, {vr(ks+t*16+j*4,4)}, {vr(Q0+j*4,4)}, {cc}")
    n0 = len(L); nextK(); n = len(L) - n0
    if n < 8: o(f"s_nop {8-n-1}")
    for i in range(4): rnd2(S0+2*i, S0+2*i+1, vT[i])
    for i in range(8): o(f"v_mul_f32 v{S0+i}, s{sSCALE}, v{S0+i}")
    for i in range(4): rnd2(S0+2*i, S0+2*i+1, vT[i])
    mx = vT[4]
    o(f"v_max3_f32 v{mx}, v{S0}, v{S0+1}, v{S0+2}"); o(f"v_max3_f32 v{vT[5]}, v{S0+3}, v{S0+4}, v{S0+5}")
    o(f"v_max3_f32 v{mx}, v{mx}, v{S0+6}, v{S0+7}"); o(f"v_max3_f32 v{mx}, v{mx}, v{vT[5]}, v{vM}")
    xmax(mx, vT[5])
    o(f"v_sub_f32 v{vAL}, v{vM}, v{mx}"); o(f"v_mov_b32 v{vM}, v{mx}")
    o(f"v_mul_f32 v{vAL}, s{sLOG2E}, v{vAL}")
    for i in range(8): o(f"v_sub_f32 v{S0+i}, v{S0+i}, v{vM}")
    o(f"v_exp_f32 v{vAL}, v{vAL}")
    for i in range(8): o(f"v_mul_f32 v{S0+i}, s{sLOG2E}, v{S0+i}")
    for i in range(8): o(f"v_exp_f32 v{S0+i}, v{S0+i}")
    for i in range(16): o(f"v_pk_mul_f32 {vr(ACC+2*i,2)}, {vr(ACC+2*i,2)}, {vr(vAL,2)} op_sel_hi:[1,0]")
    for i in range(4): o(f"v_cvt_pk_bf16_f32 v{P0+i}, v{S0+2*i}, v{S0+2*i+1}")
    o(f"v_add_f32 v{vT[0]}, v{S0}, v{S0+1}"); o(f"v_add_f32 v{vT[1]}, v{S0+2}, v{S0+3}")
    o(f"v_add_f32 v{vT[2]}, v{S0+4}, v{S0+5}"); o(f"v_add_f32 v{vT[3]}, v{S0+6}, v{S0+7}")
    o(f"v_add_f32 v{vT[0]}, v{vT[0]}, v{vT[1]}"); o(f"v_add_f32 v{vT[2]}, v{vT[2]}, v{vT[3]}")
    o(f"v_add_f32 v{vT[0]}, v{vT[0]}, v{vT[2]}"); o(f"v_fma_f32 v{vL}, v{vL}, v{vAL}, v{vT[0]}")
    o(f"s_waitcnt vmcnt({wV})")
    pv(vs, P0)
    nextV()
    if opts["PRIO"] and prio: fair()
def setoff(expr_reg_or_none, add):
    if add: o(f"s_add_u32 s{sOFF}, s{sOFF}, {hex(add)}")
    o(f"s_add_u32 s{sOFF2}, s{sOFF}, 0x1000")
def initsm():
    o(f"v_mov_b32 v{vM}, 0xff7fffff"); o(f"v_mov_b32 v{vL}, 0")
    for i in range(32): o(f"v_mov_b32 v{ACC+i}, 0")
def loadQ(base_expr_v):
    for j in range(4): o(f"ds_read_b128 {vr(Q0+j*4,4)}, v{base_expr_v} offset:{QS+j*64}")
    o("s_waitcnt lgkmcnt(0)")
def combine(vaddr, vstride, vml, mlstride, pairmode):
    ml = XT + 2; val = XT + 18
    for w in range(8): o(f"ds_read_b64 {vr(ml+2*w,2)}, v{vml} offset:{w*mlstride}")
    for w in range(8):
        if pairmode: o(f"ds_read_b64 {vr(val+2*w,2)}, v{vaddr} offset:{w*vstride}")
        else:
            o(f"v_add_u32 v{vT[0]}, {w*vstride}, v{vaddr}")
            o(f"ds_read2_b32 {vr(val+2*w,2)}, v{vT[0]} offset0:0 offset1:16")
    o("s_waitcnt lgkmcnt(8)")
    o(f"v_max3_f32 v{vM}, v{ml}, v{ml+2}, v{ml+4}"); o(f"v_max3_f32 v{vM}, v{vM}, v{ml+6}, v{ml+8}")
    o(f"v_max3_f32 v{vM}, v{vM}, v{ml+10}, v{ml+12}"); o(f"v_max_f32 v{vM}, v{vM}, v{ml+14}")
    for w in range(8): o(f"v_sub_f32 v{ml+2*w}, v{ml+2*w}, v{vM}")
    for w in range(8): o(f"v_mul_f32 v{ml+2*w}, s{sLOG2E}, v{ml+2*w}")
    for w in range(8): o(f"v_exp_f32 v{ml+2*w}, v{ml+2*w}")
    o("s_waitcnt lgkmcnt(0)")
    o(f"v_mul_f32 v{vL}, v{ml}, v{ml+1}"); o(f"v_mul_f32 v{XT}, v{ml}, v{val}"); o(f"v_mul_f32 v{XT+1}, v{ml}, v{val+1}")
    for w in range(1, 8):
        o(f"v_fmac_f32 v{vL}, v{ml+2*w}, v{ml+2*w+1}"); o(f"v_fmac_f32 v{XT}, v{ml+2*w}, v{val+2*w}"); o(f"v_fmac_f32 v{XT+1}, v{ml+2*w}, v{val+2*w+1}")
def spin_tail(label, done):
    o(f"s_cbranch_vccz {done}")
    o(f"s_sub_u32 s{sSPIN}, s{sSPIN}, 1"); o(f"s_cbranch_scc1 {done}")
    o("s_sleep 1"); o(f"s_branch {label}")
    lab(done)

SWQB = 44
sKN, sBD = 48, 49
NSTAT = opts["NSTAT"]; WQNT = opts["WQNT"]
def lds_ctr(op, off, rd):
    o(f"v_mov_b32 v{vT[0]}, 0"); o(f"v_mov_b32 v{vT[1]}, 1"); o("s_mov_b64 exec, 1")
    if op == "add": o(f"ds_add_u32 v{vT[0]}, v{vT[1]} offset:{off}")
    elif op == "addr": o(f"ds_add_rtn_u32 v{vT[2]}, v{vT[0]}, v{vT[1]} offset:{off}")
    else: o(f"ds_read_b32 v{vT[2]}, v{vT[0]} offset:{off}")
    o("s_mov_b64 exec, -1")
    if rd is not None: o("s_waitcnt lgkmcnt(0)"); o(f"v_readfirstlane_b32 s{rd}, v{vT[2]}")
def decide_dyn(bdone_known):
    dn, fin, isb, nb = U("dn"), U("fin"), U("isb"), U("nb")
    if not bdone_known:
        o(f"s_cmp_lg_u32 s{sBD}, 0"); o(f"s_cbranch_scc1 {nb}")
        lds_ctr("rd", CNT+4, sT0); o(f"s_cmp_ge_u32 s{sT0}, 8"); o(f"s_cbranch_scc1 {isb}")
        lab(nb)
    if opts["DYN"]:
        lds_ctr("addr", CNT+12, sT0); o(f"s_add_u32 s{sT0}, s{sT0}, {NSTAT*8}")
    else:
        o(f"s_add_u32 s50, s50, {8 if opts['F'] < 0 else 4}"); o(f"s_mov_b32 s{sT0}, s50")
    o(f"s_cmp_ge_u32 s{sT0}, s56"); o(f"s_cbranch_scc1 {fin}")
    o(f"s_mov_b32 s{sKN}, 0"); o(f"s_lshl_b32 s{sOFF}, s{sT0}, 13"); o(f"s_branch {dn}")
    lab(fin)
    if not bdone_known:
        f2, sp = U("f2"), U("sp")
        o(f"s_cmp_lg_u32 s{sBD}, 0"); o(f"s_cbranch_scc1 {f2}")
        lab(sp)
        lds_ctr("rd", CNT+4, sT0); o(f"s_cmp_ge_u32 s{sT0}, 8"); o(f"s_cbranch_scc1 {isb}")
        o(f"s_sub_u32 s{sSPIN}, s{sSPIN}, 1"); o(f"s_cbranch_scc1 {isb}"); o("s_sleep 2"); o(f"s_branch {sp}")
        lab(isb)
        o(f"s_mov_b32 s{sKN}, 1"); o(f"s_lshl_b32 s{sOFF}, s{sW}, 13"); o(f"s_branch {dn}")
        lab(f2)
    o(f"s_mov_b32 s{sKN}, 2"); o(f"s_add_u32 s{sT0}, s{sW}, 120"); o(f"s_lshl_b32 s{sOFF}, s{sT0}, 13")
    lab(dn)
    setoff(None, 0)
def sel_load(fn, a, b_):
    l1, l2 = U("sb"), U("sd")
    o(f"s_cmp_eq_u32 s{sKN}, 1"); o(f"s_cbranch_scc1 {l1}"); fn(a); o(f"s_branch {l2}"); lab(l1); fn(b_); lab(l2)

o("s_cmp_ge_u32 s2, 256"); o("s_cbranch_scc1 L_end")
o("s_load_dwordx16 s[36:51], s[0:1], 0"); o("s_load_dwordx8 s[52:59], s[0:1], 64"); o("s_load_dwordx4 s[60:63], s[0:1], 96")
if opts["REMAP"]:
    o(f"s_and_b32 s{sH}, s2, 7"); o(f"s_lshl_b32 s{sH}, s{sH}, 2"); o(f"s_bfe_u32 s{sB}, s2, 0x20003"); o(f"s_or_b32 s{sH}, s{sH}, s{sB}")
    o(f"s_lshr_b32 s{sB}, s2, 5"); o(f"s_andn2_b32 s2, s2, 31"); o(f"s_or_b32 s2, s2, s{sH}")
else:
    o(f"s_and_b32 s{sH}, s2, 31"); o(f"s_lshr_b32 s{sB}, s2, 5")
o(f"v_lshrrev_b32 v{vT[0]}, 6, v0"); o(f"v_and_b32 v{vLANE}, 63, v0")
o(f"v_readfirstlane_b32 s{sW}, v{vT[0]}")
o(f"v_lshrrev_b32 v{vG}, 4, v{vLANE}"); o(f"v_and_b32 v{vC}, 15, v{vLANE}")
o(f"s_mov_b32 s91, s2")
c("x operand offsets / wq offsets")
o(f"v_and_b32 v{vT[3]}, 7, v{vC}"); o(f"v_lshlrev_b32 v{vT[3]}, 11, v{vT[3]}"); o(f"v_lshl_add_u32 v{vT[3]}, v{vG}, 4, v{vT[3]}")
o(f"v_lshlrev_b32 v{vT[5]}, 16, v{vG}"); o(f"v_lshl_add_u32 v{vT[5]}, v{vC}, 4, v{vT[5]}")
o(f"v_lshlrev_b32 v{vOV}, 4, v{vLANE}")
o(f"s_and_b32 s{sT0}, s{sB}, 3"); o(f"s_lshl_b32 s{sT0}, s{sT0}, 8"); o(f"s_lshl_b32 s{sT1}, s{sW}, 5"); o(f"s_add_u32 s{sT0}, s{sT0}, s{sT1}")
o(f"s_lshl_b32 s{sT1}, s{sT0}, 1"); o(f"s_lshl_b32 s{sT0}, s{sT0}, 13"); o(f"s_lshl_b32 s{sOFF}, s{sH}, 8"); o(f"s_add_u32 s{sT0}, s{sT0}, s{sOFF}")
o(f"s_cmp_lt_u32 s{sB}, 4")
o("s_waitcnt lgkmcnt(0)")
o(f"s_cselect_b32 s{sT2}, s42, s52"); o(f"s_cselect_b32 s{sT3}, s43, s53")
stamp()
mksrd(SWQ, sT2, 0x800000); mksrd(SX, 36, 16384)
for i in range(8):
    o(f"buffer_load_dwordx4 {vr(XT+i*4,4)}, v{vT[5]}, {srd(SWQ)}, s{sT0} offen {NT}")
    if i < 7: o(f"s_add_u32 s{sT0}, s{sT0}, 0x2000")
o(f"buffer_load_dwordx4 {vr(P0,4)}, v{vT[3]}, {srd(SX)}, s{sT1} offen")
o(f"s_mov_b32 s53, {hex(EPO)}"); o(f"s_load_dword s{sEP}, s[62:63], s53")
mksrd(SWS, 62, WS_BYTES)
c("---- sentinel clears of this WG's own outboxes; zero LDS counters")
CL = ACC
for i in range(4): o(f"v_mov_b32 v{CL+i}, -1")
for i in range(4): o(f"v_mov_b32 v{CL+4+i}, 0")
o(f"ds_write_b128 v{CL+4}, {vr(CL+4,4)} offset:{CNT}"); o(f"ds_write_b128 v{CL+4}, {vr(CL+4,4)} offset:{CNT+16}"); o(f"ds_write_b128 v{CL+4}, {vr(CL+4,4)} offset:{CNT+32}")
o(f"s_lshl_b32 s{sT0}, s91, 3"); o(f"s_add_u32 s{sT0}, s{sT0}, s{sW}"); o(f"s_lshl_b32 s{sT0}, s{sT0}, 9"); o(f"s_add_u32 s{sT0}, s{sT0}, {hex(PI)}")
o(f"s_and_b32 s{sT1}, s91, 0xf8"); o(f"s_add_u32 s{sT1}, s{sT1}, s{sW}"); o(f"s_lshl_b32 s{sT1}, s{sT1}, 3"); o(f"s_and_b32 s{sT2}, s91, 7"); o(f"s_add_u32 s{sT1}, s{sT1}, s{sT2}")
o(f"s_lshl_b32 s{sT1}, s{sT1}, 9"); o(f"s_add_u32 s{sT1}, s{sT1}, {hex(BPO-512)}")
o(f"v_mov_b32 v{vT[0]}, s{sT0}"); o(f"v_mov_b32 v{vT[1]}, s{sT1}"); o(f"v_cmp_gt_u32 vcc, 32, v{vLANE}"); o("s_nop 1")
o(f"v_cndmask_b32 v{vT[0]}, v{vT[1]}, v{vT[0]}, vcc"); o(f"v_add_u32 v{vT[0]}, v{vT[0]}, v{vOV}")
o(f"buffer_store_dwordx4 {vr(CL,4)}, v{vT[0]}, {srd(SWS)}, 0 offen sc1")
o(f"s_lshr_b32 s{sT0}, s{sW}, 2"); o(f"s_lshl_b32 s{sT2}, s{sH}, 1"); o(f"s_add_u32 s{sT0}, s{sT0}, s{sT2}"); o(f"s_lshl_b32 s{sT0}, s{sT0}, 3"); o(f"s_add_u32 s{sT0}, s{sT0}, s{sB}")
o(f"s_lshl_b32 s{sT0}, s{sT0}, 8"); o(f"s_and_b32 s{sT2}, s{sW}, 3"); o(f"s_lshl_b32 s{sT2}, s{sT2}, 6"); o(f"s_add_u32 s{sT0}, s{sT0}, s{sT2}"); o(f"s_add_u32 s{sT0}, s{sT0}, {hex(OI)}")
o(f"s_sub_u32 s{sT1}, s{sT1}, {hex(BPO-512)}"); o(f"s_lshr_b32 s{sT1}, s{sT1}, 5"); o(f"s_add_u32 s{sT1}, s{sT1}, {hex(BPML)}")
o(f"v_add_u32 v{vT[0]}, s{sT0}, v{vOV}"); o(f"v_mov_b32 v{vT[1]}, s{sT1}"); o(f"v_mov_b32 v{vT[2]}, {hex(OOB)}")
o(f"v_cmp_eq_u32 vcc, 4, v{vLANE}"); o("s_nop 1"); o(f"v_cndmask_b32 v{vT[1]}, v{vT[2]}, v{vT[1]}, vcc")
o(f"v_cmp_gt_u32 vcc, 4, v{vLANE}"); o("s_nop 1"); o(f"v_cndmask_b32 v{vT[0]}, v{vT[1]}, v{vT[0]}, vcc")
o(f"buffer_store_dwordx4 {vr(CL,4)}, v{vT[0]}, {srd(SWS)}, 0 offen sc1")

o(f"s_lshl_b32 s{sT0}, s91, 20"); o(f"s_lshl_b32 s{sT1}, s91, 17")
mksrd(SAK, 38, 0x100000, sT0)
o(f"v_and_b32 v{vT[0]}, 3, v{vC}"); o(f"v_lshrrev_b32 v{vT[1]}, 2, v{vC}"); o(f"v_lshl_add_u32 v{vT[0]}, v{vT[0]}, 2, v{vT[1]}")
o(f"v_lshlrev_b32 v{vT[0]}, 8, v{vT[0]}"); o(f"v_lshl_add_u32 v{vOK}, v{vG}, 4, v{vT[0]}")
o(f"s_lshl_b32 s{sOFF}, s{sW}, 13"); setoff(None, 0)
if not opts["KL"]: loadK(SAK)
mksrd(SAV, 40, 0x100000, sT0); mksrd(SBK, 48, 0x20000, sT1); mksrd(SBV, 50, 0x20000, sT1)
o(f"s_cmp_lt_u32 s{sW}, 4"); o(f"s_cselect_b32 s{sT2}, s44, s54"); o(f"s_cselect_b32 s{sT3}, s45, s55")
mksrd(SWO, sT2, 0x800000)
mksrd(SGW, 56, 2048); mksrd(SDBG, 60, 256); mksrd(SOUT, 58, 16384)
o(f"s_mov_b32 s{sSEL0}, 0x05040100"); o(f"s_mov_b32 s{sSEL1}, 0x07060302")
o(f"s_mov_b32 s{sSCALE}, 0x3db504f3"); o(f"s_mov_b32 s{sLOG2E}, 0x3fb8aa3b"); o(f"s_mov_b32 s{sSPIN}, {opts['SPIN']}")
o(f"s_mov_b32 s{sKN}, 0"); o(f"s_mov_b32 s{sBD}, 0"); o(f"s_add_u32 s50, s{sW}, {NSTAT*8-8}"); o(f"s_mov_b32 s{sTC}, 0")
o("s_mov_b32 s56, 120")
if opts["F"] >= 0:
    FL = NSTAT*8 + 4*opts["F"]
    assert FL <= 120
    o(f"s_add_u32 s50, s{sW}, {FL-4}"); o(f"s_add_u32 s57, s{sW}, {NSTAT*8-8}")
    o(f"s_cmp_lt_u32 s{sW}, 4"); o(f"s_cselect_b32 s50, s50, s57"); o(f"s_cselect_b32 s56, s56, {FL}")
o(f"s_mov_b32 s44, 0x07060500"); o(f"s_mov_b32 s45, 0x07060501"); o(f"s_mov_b32 s46, 0x07060502"); o(f"s_mov_b32 s47, 0x07060503")
o(f"s_mov_b32 s54, 0x0c0c0400"); o(f"s_mov_b32 s55, 0x04000c0c")
c("persistent LDS bases")
o(f"s_mul_i32 s{sT0}, s{sW}, 4224"); o(f"v_mul_u32_u24 v{vT[6]}, 528, v{vC}"); o(f"v_add_u32 v{vT[6]}, s{sT0}, v{vT[6]}")
o(f"v_lshl_add_u32 v{vT[6]}, v{vG}, 4, v{vT[6]}")
c("reduce address: QRED + half*4*4224 + w*528 + (l&31)*16 ; publish offset")
o(f"v_lshrrev_b32 v{vT[0]}, 5, v{vLANE}"); o(f"v_mul_u32_u24 v{vT[1]}, {4*4224}, v{vT[0]}"); o(f"v_and_b32 v{vT[2]}, 31, v{vLANE}"); o(f"v_lshlrev_b32 v{vT[2]}, 4, v{vT[2]}")
o(f"s_mul_i32 s{sT0}, s{sW}, 528"); o(f"v_add3_u32 v{vT[1]}, v{vT[1]}, v{vT[2]}, s{sT0}")
o(f"v_lshl_add_u32 v{vT[7]}, v{vT[0]}, 13, v{vT[2]}")
o(f"v_mov_b32 v{vT[3]}, {hex(OOB)}"); o(f"v_cmp_gt_u32 vcc, 32, v{vLANE}"); o("s_nop 1"); o(f"v_cndmask_b32 v{vT[2]}, v{vT[3]}, v{vT[2]}, vcc")
o(f"s_lshr_b32 s{sT0}, s{sB}, 2"); o(f"s_lshl_b32 s{sT0}, s{sT0}, 5"); o(f"s_add_u32 s{sT0}, s{sT0}, s{sH}"); o(f"s_lshl_b32 s{sT0}, s{sT0}, 2")
o(f"s_and_b32 s{sT1}, s{sB}, 3"); o(f"s_add_u32 s{sT0}, s{sT0}, s{sT1}"); o(f"s_lshl_b32 s{sT0}, s{sT0}, 12"); o(f"s_lshl_b32 s{sT1}, s{sW}, 9"); o(f"s_add_u32 s{sT0}, s{sT0}, s{sT1}")
o(f"s_waitcnt vmcnt({2 if opts['KL'] else 10}) lgkmcnt(0)")
if opts["KL"] == 2: loadK(SAK)
o(f"s_xor_b32 s53, s{sEP}, 0x5bd1e995"); o(f"v_mov_b32 v{vAL1}, s53")
stamp()
pv(XT, P0, first=True)
o("s_mov_b32 exec_lo, 0x00ff00ff"); o("s_mov_b32 exec_hi, 0x00ff00ff"); o("s_nop 5")
for e in range(8): o(f"ds_write_b128 v{vT[6]}, {vr(ACC+e*4,4)} offset:{QRED+e*64}")
o("s_mov_b64 exec, -1")
if opts["KL"] == 1: loadK(SAK)
o("s_waitcnt lgkmcnt(0)" if opts["CW"] else "s_waitcnt vmcnt(8) lgkmcnt(0)"); o("s_barrier")
stamp()
for k in range(4): o(f"ds_read_b128 {vr(XT+4*k,4)}, v{vT[1]} offset:{QRED+k*4224}")
o("s_waitcnt lgkmcnt(0)")
def red4(b0, n):
    st = n // 2
    while st:
        for k in range(4*st): o(f"v_add_f32 v{b0+k}, v{b0+k}, v{b0+4*st+k}")
        st //= 2
    for k in range(4): o(f"v_mov_b32 v{b0+4+k}, v{b0+k}")
    o("s_nop 0")
    for k in range(4): o(f"v_permlane32_swap_b32 v{b0+4+k}, v{b0+k}")
    o("s_nop 0")
    for k in range(4): o(f"v_add_f32 v{b0+k}, v{b0+k}, v{b0+4+k}")
red4(XT, 4)
for k in range(4): o(f"v_perm_b32 v{XT+k}, v{XT+k}, v{vAL1}, s{44+k}")
o(f"buffer_store_dwordx4 {vr(XT,4)}, v{vT[2]}, {srd(SWS)}, s{sT0} offen sc1")
if opts["KL"] == 3: loadK(SAK)
o("s_barrier")
if opts["KL"] == 4: loadK(SAK)
stamp()
XK, XV = XT, XT + 32
def pre_rest(v0=True):
    if v0: loadV(SAV)
    if opts["D2"]: setoff(None, 0x10000); loadK(SAK, XK); loadV(SAV, XV)
    setoff(None, 0x10000)
o(f"s_cmp_eq_u32 s{sW}, 0"); o("s_cbranch_scc1 L_w0")
o("s_nop 0")
pre_rest()
if opts["CW"]: o(f"s_waitcnt vmcnt({24 if opts['D2'] else 8})")
o("s_barrier"); o("s_branch L_go")
lab("L_w0")
o(f"v_mov_b32 v{vT[3]}, {hex(OOB)}"); o(f"v_mov_b32 v{vT[5]}, s91"); o(f"v_cmp_eq_u32 vcc, 0, v{vLANE}"); o(f"v_mov_b32 v{vT[4]}, 1")
o(f"v_cndmask_b32 v{vT[3]}, v{vT[3]}, v{vT[5]}, vcc")
o(f"s_lshl_b32 s{sT1}, s{sB}, 9"); o(f"s_lshl_b32 s{sT0}, s{sH}, 14"); o(f"s_add_u32 s{sT0}, s{sT0}, s{sT1}"); o(f"s_add_u32 s{sT2}, s{sT0}, 0x1000")
o(f"v_and_b32 v{vT[1]}, 3, v{vLANE}"); o(f"v_lshlrev_b32 v{vT[1]}, 6, v{vT[1]}"); o(f"v_bfe_u32 v{vT[2]}, v{vLANE}, 2, 3"); o(f"v_lshl_add_u32 v{vT[1]}, v{vT[2]}, 1, v{vT[1]}")
def tagchk(b0, first):
    o(f"v_perm_b32 v{vT[8]}, v{b0+1}, v{b0}, s54"); o(f"v_perm_b32 v{vT[9]}, v{b0+3}, v{b0+2}, s55")
    o(f"v_or_b32 v{vT[8]}, v{vT[8]}, v{vT[9]}")
    if first: o(f"v_xor_b32 v{vT[0]}, v{vT[8]}, v{vAL1}")
    else: o(f"v_xor_b32 v{vT[8]}, v{vT[8]}, v{vAL1}"); o(f"v_or_b32 v{vT[0]}, v{vT[0]}, v{vT[8]}")
def qwrite(b0, off):
    o(f"v_cvt_pk_bf16_f32 v{b0}, v{b0}, v{b0+1}"); o(f"v_cvt_pk_bf16_f32 v{b0+1}, v{b0+2}, v{b0+3}")
    o(f"ds_write_b16 v{vT[1]}, v{b0} offset:{off}"); o(f"ds_write_b16_d16_hi v{vT[1]}, v{b0} offset:{off+16}")
    o(f"ds_write_b16 v{vT[1]}, v{b0+1} offset:{off+32}"); o(f"ds_write_b16_d16_hi v{vT[1]}, v{b0+1} offset:{off+48}")
QT = XT + 64
lab("L_pollQ")
o(f"buffer_load_dwordx4 {vr(QT,4)}, v{vT[7]}, {srd(SWS)}, s{sT0} offen sc1"); o(f"buffer_load_dwordx4 {vr(QT+4,4)}, v{vT[7]}, {srd(SWS)}, s{sT2} offen sc1")
o("s_waitcnt vmcnt(0)")
tagchk(QT, True); tagchk(QT+4, False)
o(f"v_cmp_ne_u32 vcc, 0, v{vT[0]}")
spin_tail("L_pollQ", "L_pollQ_done")
for k in range(8): o(f"v_and_b32 v{QT+k}, 0xffffff00, v{QT+k}")
red4(QT, 2); qwrite(QT, QS)
o("s_waitcnt lgkmcnt(0)"); o("s_barrier")
stamp()
o(f"buffer_store_byte v{vT[4]}, v{vT[3]}, {srd(SDBG)}, 0 offen sc1")
loadV(SAV)
lab("L_pollQB")
o(f"s_and_b32 s{sT0}, s{sH}, 0x18"); o(f"s_add_u32 s{sT0}, s{sT0}, 32"); o(f"s_lshl_b32 s{sT0}, s{sT0}, 14"); o(f"s_add_u32 s{sT0}, s{sT0}, s{sT1}")
for v in range(8):
    o(f"s_add_u32 s{sT2}, s{sT0}, 0x1000")
    o(f"buffer_load_dwordx4 {vr(XT+v*8,4)}, v{vT[7]}, {srd(SWS)}, s{sT0} offen sc1"); o(f"buffer_load_dwordx4 {vr(XT+v*8+4,4)}, v{vT[7]}, {srd(SWS)}, s{sT2} offen sc1")
    if v < 7: o(f"s_add_u32 s{sT0}, s{sT0}, 0x4000")
o("s_waitcnt vmcnt(0)")
for v in range(16): tagchk(XT+4*v, v == 0)
o(f"v_cmp_ne_u32 vcc, 0, v{vT[0]}")
spin_tail("L_pollQB", "L_pollQB_done")
for k in range(64): o(f"v_and_b32 v{XT+k}, 0xffffff00, v{XT+k}")
for v in range(8): red4(XT+8*v, 2); qwrite(XT+8*v, QS+256+256*v)
o(f"v_mov_b32 v{vT[0]}, 0"); o(f"v_mov_b32 v{vT[2]}, 8"); o(f"ds_write_b32 v{vT[0]}, v{vT[2]} offset:{CNT+4}")
o("s_waitcnt lgkmcnt(0)")
pre_rest(False)
lab("L_go")
o(f"v_lshlrev_b32 v{vT[8]}, 4, v{vG}")
loadQ(vT[8]); initsm()
stamp()
if opts["D2"]:
    tile(lambda: loadK(SAK), lambda: loadV(SAV), wK=24, wV=24)
    tile(lambda: None, lambda: o("s_nop 7"), wK=24, wV=16, ks=XK, vs=XV)
    setoff(None, 0x10000); o(f"s_mov_b32 s{sCNT}, 2")
else: o(f"s_mov_b32 s{sCNT}, 0"); o(f"v_lshlrev_b32 v{XT+49}, 2, v{vLANE}")
c("---- main loop over A tiles")
lab("L_A")
tile(lambda: sel_load(loadK, SAK, SBK), lambda: sel_load(loadV, SAV, SBV))
o(f"s_cmp_lt_u32 s{sCNT}, {NSTAT-1}"); o("s_cbranch_scc1 L_extra")
o(f"s_cmp_eq_u32 s{sKN}, 1"); o("s_cbranch_scc1 L_B")
lab("L_A2")
o(f"s_cmp_eq_u32 s{sKN}, 2"); o("s_cbranch_scc1 L_last")
lab("L_A3")
decide_dyn(False)
o("s_branch L_A")
c("---- extras in the static phase")
lab("L_extra")
o(f"s_cmp_eq_u32 s{sCNT}, {NSTAT-3}"); o("s_cbranch_scc1 L_E2")
o(f"s_cmp_eq_u32 s{sCNT}, {NSTAT-2}"); o("s_cbranch_scc1 L_E3")
lab("L_Eret")
o(f"s_add_u32 s{sCNT}, s{sCNT}, 1"); o(f"s_add_u32 s{sOFF}, s{sOFF}, 0x10000"); setoff(None, 0); o("s_branch L_A")
lab("L_E2")
c("issue flag load + gate inputs")
GX = XT + 16
o(f"v_lshlrev_b32 v{XT+49}, 2, v{vLANE}")
o(f"buffer_load_dword v{XT+48}, v{XT+49}, {srd(SDBG)}, 0 offen sc1")
o(f"v_lshlrev_b32 v{vT[4]}, 5, v{vLANE}"); o(f"s_lshl_b32 s{sT1}, s{sW}, 11")
o(f"buffer_load_dwordx4 {vr(GX,4)}, v{vT[4]}, {srd(SX)}, s{sT1} offen"); o(f"buffer_load_dwordx4 {vr(GX+4,4)}, v{vT[4]}, {srd(SX)}, s{sT1} offen offset:16")
o(f"buffer_load_dwordx4 {vr(GX+8,4)}, v{vT[4]}, {srd(SGW)}, 0 offen"); o(f"buffer_load_dwordx4 {vr(GX+12,4)}, v{vT[4]}, {srd(SGW)}, 0 offen offset:16")
o("s_branch L_Eret")
lab("L_E3")
o(f"s_mov_b32 s{sT0}, 0x01010101")
lab("L_poll0")
o(f"v_cmp_ne_u32 vcc, s{sT0}, v{XT+48}"); o("s_cbranch_vccz L_poll0_done")
o(f"s_sub_u32 s{sSPIN}, s{sSPIN}, 1"); o("s_cbranch_scc1 L_poll0_done"); o("s_sleep 8")
o(f"buffer_load_dword v{XT+48}, v{XT+49}, {srd(SDBG)}, 0 offen sc1"); o("s_waitcnt vmcnt(0)"); o("s_branch L_poll0")
lab("L_poll0_done")
stamp()
c("gate for batch w: sigmoid(bf16(sum(bf16(x*gw))))")
for i in range(8):
    a, b_ = GX+16+2*i, GX+17+2*i
    o(f"v_lshlrev_b32 v{vT[0]}, 16, v{GX+i}"); o(f"v_lshlrev_b32 v{vT[1]}, 16, v{GX+8+i}"); o(f"v_mul_f32 v{a}, v{vT[0]}, v{vT[1]}")
    o(f"v_and_b32 v{vT[0]}, 0xffff0000, v{GX+i}"); o(f"v_and_b32 v{vT[1]}, 0xffff0000, v{GX+8+i}"); o(f"v_mul_f32 v{b_}, v{vT[0]}, v{vT[1]}")
    rnd2(a, b_, vT[2])
    o(f"v_add_f32 v{a}, v{a}, v{b_}")
    if i: o(f"v_add_f32 v{GX+16}, v{GX+16}, v{a}")
gs = GX + 16
for r in (8, 4, 2, 1):
    o("s_nop 1"); o(f"v_add_f32_dpp v{gs}, v{gs}, v{gs} row_ror:{r} row_mask:0xf bank_mask:0xf")
xmax(gs, vT[0], "v_add_f32")
rnd2(gs, gs+1, vT[2])
o(f"v_mul_f32 v{gs}, s{sLOG2E}, v{gs}"); o(f"v_exp_f32 v{gs}, -v{gs}"); o("s_nop 0"); o(f"v_add_f32 v{gs}, 1.0, v{gs}")
o(f"v_rcp_f32 v{gs}, v{gs}"); o("s_nop 0"); rnd2(gs, gs+1, vT[2])
o(f"v_sub_f32 v{gs+1}, 1.0, v{gs}"); rnd2(gs+1, gs+2, vT[2])
o(f"s_lshl_b32 s{sT0}, s{sW}, 3"); o(f"v_mov_b32 v{vT[0]}, s{sT0}"); o(f"ds_write_b64 v{vT[0]}, {vr(gs,2)} offset:{GATE}")
o(f"s_add_u32 s{sCNT}, s{sCNT}, 1")
o("s_branch L_A3")
c("---- branch B: 2 tiles per wave")
lab("L_B")
stamp()
SV = XT + 64
o(f"s_mov_b32 s{sBD}, 1")
o(f"v_and_b32 v{vT[8]}, 7, v{vC}"); o(f"v_lshlrev_b32 v{vT[8]}, 8, v{vT[8]}"); o(f"v_lshl_add_u32 v{vT[8]}, v{vG}, 4, v{vT[8]}"); o(f"v_add_u32 v{vT[8]}, 256, v{vT[8]}")
for i in range(32): o(f"v_mov_b32 v{SV+i}, v{ACC+i}")
o(f"v_mov_b32 v{SV-2}, v{vM}"); o(f"v_mov_b32 v{SV-1}, v{vL}")
loadQ(vT[8]); initsm()
tile(lambda: (setoff(None, 0x10000), loadK(SBK)), lambda: loadV(SBV))
decide_dyn(True)
tile(lambda: loadK(SAK), lambda: loadV(SAV))
c("B epilogue: last arriver combines across waves and publishes")
xmax(vL, vT[0], "v_add_f32")
o(f"s_lshl_b32 s{sT0}, s{sW}, 6"); o(f"v_lshlrev_b32 v{vT[1]}, 3, v{vC}"); o(f"v_add_u32 v{vT[1]}, s{sT0}, v{vT[1]}")
o("s_mov_b32 exec_lo, 0x00ff00ff"); o("s_mov_b32 exec_hi, 0x00ff00ff"); o("s_nop 1")
o(f"ds_write_b64 v{vT[1]}, {vr(vM,2)} offset:{BML}")
for e in range(8): o(f"ds_write_b128 v{vT[6]}, {vr(ACC+e*4,4)} offset:{BCOMB+e*64}")
o("s_mov_b64 exec, -1"); o("s_waitcnt lgkmcnt(0)")
lds_ctr("addr", CNT+8, sT0)
o(f"s_cmp_lg_u32 s{sT0}, 7"); o("s_cbranch_scc1 L_Bdone")
o(f"v_lshlrev_b32 v{vT[2]}, 3, v{vLANE}"); o(f"v_add_u32 v{vT[1]}, {BCOMB}, v{vT[2]}"); o(f"v_mov_b32 v{vT[3]}, {BML}")
o(f"v_mov_b32 v{vT[4]}, {hex(OOB)}"); o(f"v_cmp_eq_u32 vcc, 0, v{vLANE}"); o("s_nop 1"); o(f"v_cndmask_b32 v{vT[4]}, v{vT[4]}, 0, vcc")
o(f"s_and_b32 s{sT1}, s91, 0xf8"); o(f"s_lshl_b32 s{sT1}, s{sT1}, 3"); o(f"s_and_b32 s{sT2}, s91, 7"); o(f"s_add_u32 s{sT1}, s{sT1}, s{sT2}")
o(f"s_lshl_b32 s{sT0}, s{sT1}, 9"); o(f"s_add_u32 s{sT0}, s{sT0}, {hex(BPO)}"); o(f"s_lshl_b32 s{sT1}, s{sT1}, 4"); o(f"s_add_u32 s{sT1}, s{sT1}, {hex(BPML)}")
o(f"s_mov_b32 s{sT2}, 8")
lab("L_Bc")
combine(vT[1], 4224, vT[3], 64, True)
o(f"buffer_store_dwordx2 {vr(XT,2)}, v{vT[2]}, {srd(SWS)}, s{sT0} offen sc1")
o(f"buffer_store_dwordx2 {vr(vM,2)}, v{vT[4]}, {srd(SWS)}, s{sT1} offen sc1")
o(f"v_add_u32 v{vT[1]}, 528, v{vT[1]}"); o(f"v_add_u32 v{vT[3]}, 8, v{vT[3]}")
o(f"s_add_u32 s{sT0}, s{sT0}, 0x1000"); o(f"s_add_u32 s{sT1}, s{sT1}, 0x80")
o(f"s_sub_u32 s{sT2}, s{sT2}, 1"); o(f"s_cmp_lg_u32 s{sT2}, 0"); o("s_cbranch_scc1 L_Bc")
lab("L_Bdone")
o(f"v_lshlrev_b32 v{vT[8]}, 4, v{vG}")
for i in range(32): o(f"v_mov_b32 v{ACC+i}, v{SV+i}")
o(f"v_mov_b32 v{vM}, v{SV-2}"); o(f"v_mov_b32 v{vL}, v{SV-1}")
loadQ(vT[8])
stamp()
o("s_branch L_A2")
lab("L_last")
def last_nextK():
    o(f"s_lshl_b32 s{sT0}, s{sH}, 7"); o(f"s_and_b32 s{sT1}, s{sW}, 3"); o(f"s_lshl_b32 s{sT1}, s{sT1}, 5"); o(f"s_add_u32 s{sT0}, s{sT0}, s{sT1}")
    o(f"s_lshl_b32 s{sT0}, s{sT0}, 11"); o(f"s_lshl_b32 s{sT1}, s{sB}, 8"); o(f"s_add_u32 s{sT0}, s{sT0}, s{sT1}")
    o(f"v_lshlrev_b32 v{vT[9]}, 14, v{vG}"); o(f"v_lshl_add_u32 v{vT[9]}, v{vC}, 4, v{vT[9]}")
    o(f"s_lshl_b32 s{sT2}, s91, 3"); o(f"s_add_u32 s{sT2}, s{sT2}, s{sW}"); o(f"s_lshl_b32 s{sT3}, s{sT2}, 4"); o(f"s_add_u32 s{sT3}, s{sT3}, {hex(BPML)}")
    o(f"s_lshl_b32 s{sT2}, s{sT2}, 9"); o(f"s_add_u32 s{sT2}, s{sT2}, {hex(BPO)}")
    o(f"v_lshlrev_b32 v{XT+44}, 3, v{vLANE}"); o(f"v_mov_b32 v{XT+45}, 0")
    o(f"buffer_load_dwordx2 {vr(XT+40,2)}, v{XT+44}, {srd(SWS)}, s{sT2} offen sc1")
    o(f"buffer_load_dwordx2 {vr(XT+42,2)}, v{XT+45}, {srd(SWS)}, s{sT3} offen sc1")
    for i in range(8):
        o(f"buffer_load_dwordx4 {vr(KB+i*4,4)}, v{vT[9]}, {srd(SWO)}, s{sT0} offen offset:{(i&1)*2048} {NT}")
        if i & 1 and i < 7: o(f"s_add_u32 s{sT0}, s{sT0}, 0x1000")
tile(last_nextK, lambda: None, wK=8, wV=8, prio=False)
stamp()
if TS:
    o(f"s_lshl_b32 s{sT0}, s91, 3"); o(f"s_add_u32 s{sT0}, s{sT0}, s{sW}"); o(f"s_lshl_b32 s{sT0}, s{sT0}, 2"); o(f"s_add_u32 s{sT0}, s{sT0}, {hex(TSO+0x4000)}")
    o(f"v_mov_b32 v{vT[0]}, s2"); o(f"v_mov_b32 v{vT[1]}, 0"); o(f"buffer_store_dword v{vT[0]}, v{vT[1]}, {srd(SWS)}, s{sT0} offen")
c("---- tail: combine A (wave 0) and B splits (wave 1)")
lab("L_pollB")
o(f"v_cmp_eq_u32 vcc, -1, v{XT+40}"); o(f"v_cmp_eq_u32 s[2:3], -1, v{XT+41}"); o("s_or_b64 vcc, vcc, s[2:3]")
o(f"v_cmp_eq_u32 s[2:3], -1, v{XT+42}"); o("s_or_b64 vcc, vcc, s[2:3]"); o(f"v_cmp_eq_u32 s[2:3], -1, v{XT+43}"); o("s_or_b64 vcc, vcc, s[2:3]")
o("s_cbranch_scc0 L_pollB_done")
o(f"s_sub_u32 s{sSPIN}, s{sSPIN}, 1"); o("s_cbranch_scc1 L_pollB_done"); o("s_sleep 1")
o(f"buffer_load_dwordx2 {vr(XT+40,2)}, v{XT+44}, {srd(SWS)}, s{sT2} offen sc1")
o(f"buffer_load_dwordx2 {vr(XT+42,2)}, v{XT+45}, {srd(SWS)}, s{sT3} offen sc1")
o("s_waitcnt vmcnt(0)"); o("s_branch L_pollB")
lab("L_pollB_done")
xmax(vL, vT[0], "v_add_f32")
o(f"s_lshl_b32 s{sT0}, s{sW}, 9"); o(f"v_lshl_add_u32 v{vT[1]}, v{vG}, 4, s{sT0}"); o(f"v_add_u32 v{vT[2]}, s{sT0}, v{XT+44}")
o(f"s_lshl_b32 s{sT0}, s{sW}, 3"); o(f"v_mov_b32 v{vT[3]}, s{sT0}")
o(f"ds_write_b64 v{vT[2]}, {vr(XT+40,2)} offset:{ACOMB+B2D}"); o(f"ds_write_b64 v{vT[3]}, {vr(XT+42,2)} offset:{AML+B2D}")
o(f"ds_write_b64 v{vT[3]}, {vr(vM,2)} offset:{AML}")
o("s_mov_b32 exec_lo, 0x00010001"); o("s_mov_b32 exec_hi, 0x00010001"); o("s_nop 1")
for e in range(8): o(f"ds_write_b128 v{vT[1]}, {vr(ACC+e*4,4)} offset:{ACOMB+e*64}")
o("s_mov_b64 exec, -1")
o(f"v_and_b32 v{vT[4]}, 7, v{vC}"); o(f"s_lshr_b32 s{sT1}, s{sW}, 2"); o(f"s_lshl_b32 s{sT0}, s{sT1}, 2"); o(f"v_lshl_add_u32 v{vT[5]}, v{vT[4]}, 3, s{sT0}")
o("s_waitcnt lgkmcnt(0)"); o("s_barrier")
o(f"ds_read_b32 v{vAL1}, v{vT[5]} offset:{GATE}")
o(f"s_cmp_gt_u32 s{sW}, 1"); o("s_cbranch_scc1 L_nocomb")
o(f"s_mul_i32 s{sT0}, s{sW}, {B2D}"); o(f"s_add_u32 s{sT2}, s{sT0}, {AML}"); o(f"s_add_u32 s{sT0}, s{sT0}, {ACOMB}")
o(f"v_and_b32 v{vT[1]}, 3, v{vLANE}"); o(f"v_lshlrev_b32 v{vT[1]}, 7, v{vT[1]}"); o(f"v_lshrrev_b32 v{vT[2]}, 2, v{vLANE}"); o(f"v_lshl_add_u32 v{vT[1]}, v{vT[2]}, 2, v{vT[1]}")
o(f"v_add_u32 v{vT[1]}, s{sT0}, v{vT[1]}"); o(f"v_mov_b32 v{vT[3]}, s{sT2}")
combine(vT[1], 512, vT[3], 8, False)
o(f"v_rcp_f32 v{vL}, v{vL}"); o("s_nop 0"); o(f"v_mul_f32 v{XT}, v{XT}, v{vL}"); o(f"v_mul_f32 v{XT+1}, v{XT+1}, v{vL}")
o(f"v_cvt_pk_bf16_f32 v{XT}, v{XT}, v{XT+1}")
o(f"s_lshl_b32 s{sT0}, s{sH}, 1"); o(f"s_add_u32 s{sT0}, s{sT0}, s{sW}"); o(f"s_lshl_b32 s{sT0}, s{sT0}, 3"); o(f"s_add_u32 s{sT0}, s{sT0}, s{sB}"); o(f"s_lshl_b32 s{sT0}, s{sT0}, 8"); o(f"s_add_u32 s{sT0}, s{sT0}, {hex(OI)}")
o(f"v_lshlrev_b32 v{vT[2]}, 2, v{vLANE}")
o(f"buffer_store_dword v{XT}, v{vT[2]}, {srd(SWS)}, s{sT0} offen sc1")
lab("L_nocomb")
stamp()
c("poll o operand: OI[(h*2+mat)*8 + (c&7)]*256 + (w&3)*64 + g*16")
o(f"s_lshr_b32 s{sT1}, s{sW}, 2"); o(f"s_lshl_b32 s{sT0}, s{sH}, 1"); o(f"s_add_u32 s{sT0}, s{sT0}, s{sT1}"); o(f"s_lshl_b32 s{sT0}, s{sT0}, 11")
o(f"s_and_b32 s{sT1}, s{sW}, 3"); o(f"s_lshl_b32 s{sT1}, s{sT1}, 6"); o(f"s_add_u32 s{sT0}, s{sT0}, s{sT1}"); o(f"s_add_u32 s{sT0}, s{sT0}, {hex(OI)}")
o(f"v_lshlrev_b32 v{vT[4]}, 8, v{vT[4]}"); o(f"v_lshl_add_u32 v{vT[4]}, v{vG}, 4, v{vT[4]}")
lab("L_pollO")
o(f"buffer_load_dwordx4 {vr(P0,4)}, v{vT[4]}, {srd(SWS)}, s{sT0} offen sc1"); o("s_waitcnt vmcnt(0)")
o(f"v_max3_u32 v{vT[0]}, v{P0}, v{P0+1}, v{P0+2}"); o(f"v_max_u32 v{vT[0]}, v{vT[0]}, v{P0+3}"); o(f"v_cmp_eq_u32 vcc, -1, v{vT[0]}")
spin_tail("L_pollO", "L_pollO_done")
stamp()
o("s_waitcnt lgkmcnt(0)"); o(f"v_mov_b32 v{vAL}, v{vAL1}")
pv(KB, P0, first=True)
o("s_nop 7")
for i in range(16): o(f"v_pk_mul_f32 {vr(ACC+2*i,2)}, {vr(ACC+2*i,2)}, {vr(vAL,2)} op_sel_hi:[1,0]")
o("s_mov_b32 exec_lo, 0x00ff00ff"); o("s_mov_b32 exec_hi, 0x00ff00ff"); o("s_nop 1")
for e in range(8): o(f"ds_write_b128 v{vT[6]}, {vr(ACC+e*4,4)} offset:{ORED+e*64}")
o("s_mov_b64 exec, -1")
o(f"s_mul_i32 s{sT0}, s{sW}, 528"); o(f"s_add_u32 s{sT0}, s{sT0}, {ORED}")
o(f"v_and_b32 v{vT[1]}, 3, v{vLANE}"); o(f"v_lshlrev_b32 v{vT[1]}, 7, v{vT[1]}"); o(f"v_lshrrev_b32 v{vT[2]}, 2, v{vLANE}"); o(f"v_lshl_add_u32 v{vT[1]}, v{vT[2]}, 2, v{vT[1]}")
o(f"v_add_u32 v{vT[1]}, s{sT0}, v{vT[1]}")
for w in range(1, 8): o(f"v_add_u32 v{XT+16+w}, {w*4224}, v{vT[1]}")
o("s_waitcnt lgkmcnt(0)"); o("s_barrier")
for w in range(8): o(f"ds_read2_b32 {vr(XT+2*w,2)}, v{vT[1] if w==0 else XT+16+w} offset0:0 offset1:16")
o(f"s_lshl_b32 s{sT0}, s91, 3"); o(f"s_add_u32 s{sT0}, s{sT0}, s{sW}"); o(f"s_lshl_b32 s{sT0}, s{sT0}, 9"); o(f"s_add_u32 s{sT0}, s{sT0}, {hex(PI)}")
o("s_waitcnt lgkmcnt(0)")
for st in (8, 4, 2):
    for k in range(st): o(f"v_add_f32 v{XT+k}, v{XT+k}, v{XT+st+k}")
o(f"buffer_store_dwordx2 {vr(XT,2)}, v{XT+44}, {srd(SWS)}, s{sT0} offen sc1")
o(f"s_cmp_lg_u32 s{sW}, 0"); o("s_cbranch_scc1 L_end")
stamp()
c("final reduce: PI[(b*32+h')*8 + (h>>2)]*512 + (h&3)*128 + (l&7)*16, h' = (l>>3)+8k")
o(f"s_lshl_b32 s{sT0}, s{sB}, 17"); o(f"s_lshl_b32 s{sT1}, s{sH}, 7"); o(f"s_add_u32 s{sT0}, s{sT0}, s{sT1}"); o(f"s_add_u32 s{sT0}, s{sT0}, {hex(PI)}")
o(f"s_add_u32 s{sT1}, s{sT0}, 0x8000"); o(f"s_add_u32 s{sT2}, s{sT0}, 0x10000"); o(f"s_add_u32 s{sT3}, s{sT0}, 0x18000")
o(f"v_lshrrev_b32 v{vT[1]}, 3, v{vLANE}"); o(f"v_lshlrev_b32 v{vT[1]}, 12, v{vT[1]}"); o(f"v_and_b32 v{vT[2]}, 7, v{vLANE}"); o(f"v_lshl_add_u32 v{vT[1]}, v{vT[2]}, 4, v{vT[1]}")
lab("L_pollP")
for k, sr in enumerate((sT0, sT1, sT2, sT3)): o(f"buffer_load_dwordx4 {vr(XT+4*k,4)}, v{vT[1]}, {srd(SWS)}, s{sr} offen sc1")
o("s_waitcnt vmcnt(0)")
o(f"v_max3_u32 v{vT[0]}, v{XT}, v{XT+1}, v{XT+2}")
for k in range(3, 15, 2): o(f"v_max3_u32 v{vT[0]}, v{vT[0]}, v{XT+k}, v{XT+k+1}")
o(f"v_max_u32 v{vT[0]}, v{vT[0]}, v{XT+15}"); o(f"v_cmp_eq_u32 vcc, -1, v{vT[0]}")
spin_tail("L_pollP", "L_pollP_done")
for st in (8, 4):
    for k in range(st): o(f"v_add_f32 v{XT+k}, v{XT+k}, v{XT+st+k}")
o("s_nop 1")
for k in range(4): o(f"v_add_f32_dpp v{XT+k}, v{XT+k}, v{XT+k} row_ror:8 row_mask:0xf bank_mask:0xf")
for sw in ("v_permlane32_swap_b32", "v_permlane16_swap_b32"):
    for k in range(4): o(f"v_mov_b32 v{XT+4+k}, v{XT+k}")
    o("s_nop 0")
    for k in range(4): o(f"{sw} v{XT+4+k}, v{XT+k}")
    o("s_nop 0")
    for k in range(4): o(f"v_add_f32 v{XT+k}, v{XT+k}, v{XT+4+k}")
o(f"v_cvt_pk_bf16_f32 v{XT}, v{XT}, v{XT+1}"); o(f"v_cvt_pk_bf16_f32 v{XT+1}, v{XT+2}, v{XT+3}")
o(f"s_lshr_b32 s{sT0}, s{sH}, 2"); o(f"s_lshl_b32 s{sT0}, s{sT0}, 11"); o(f"s_lshl_b32 s{sT1}, s{sB}, 8"); o(f"s_add_u32 s{sT0}, s{sT0}, s{sT1}")
o(f"s_and_b32 s{sT1}, s{sH}, 3"); o(f"s_lshl_b32 s{sT1}, s{sT1}, 6"); o(f"s_add_u32 s{sT0}, s{sT0}, s{sT1}")
o(f"v_mov_b32 v{vT[3]}, {hex(OOB)}"); o(f"v_cmp_gt_u32 vcc, 8, v{vLANE}"); o("s_nop 1"); o(f"v_cndmask_b32 v{vT[3]}, v{vT[3]}, v{XT+44}, vcc")
o(f"buffer_store_dwordx2 {vr(XT,2)}, v{vT[3]}, {srd(SOUT)}, s{sT0} offen")
o("s_cmp_lg_u32 s91, 0"); o("s_cbranch_scc1 L_nobump")
o(f"s_add_u32 s{sEP}, s{sEP}, 0x01000193"); o(f"v_mov_b32 v{vT[0]}, s{sEP}"); o(f"v_mov_b32 v{vT[1]}, {hex(EPO)}")
o(f"buffer_store_dword v{vT[0]}, v{vT[1]}, {srd(SWS)}, 0 offen")
lab("L_nobump")
if TS:
    stamp()
    o(f"s_lshl_b32 s{sT0}, s91, 6"); o(f"s_add_u32 s{sT0}, s{sT0}, {hex(TSO)}"); o(f"v_mov_b32 v{vT[1]}, 0")
    o("s_getreg_b32 s2, hwreg(HW_REG_XCC_ID)"); o(f"v_mov_b32 v{vT[0]}, s2")
    o(f"buffer_store_dword v{vT[0]}, v{vT[1]}, {srd(SWS)}, s{sT0} offen offset:60")
    for i in range(nstamp[0]):
        o(f"v_mov_b32 v{vT[0]}, s{TSR[i]}"); o(f"buffer_store_dword v{vT[0]}, v{vT[1]}, {srd(SWS)}, s{sT0} offen offset:{i*4}")
lab("L_end")
hdr = open("cdna_kernels/" + NAME + ".s.ref").read().split("\n")
out = []
for ln in hdr:
    if ln.startswith("; @launch"): out.append(f"; @launch grid=(256,1,1) block=(512,1,1) lds={LDS_BYTES}")
    elif ln.startswith(NAME + "_kernel:"):
        out.append(ln); out += L; break
    else: out.append(ln)
out.append("s_endpgm")
tail = hdr[hdr.index('.section .rodata,"a"'):]
out += [t for t in tail]
open(sys.argv[1], "w").write("\n".join(out) + "\n")
print("lines", len(L), "lds", LDS_BYTES, "stamps", nstamp[0])
```

```python
import sys
NAME = "gated_mix__mha_block_cached__gqa_block_cached__decode"
opts = dict(TS=0, SPIN=400000, NT="nt", WQNT="", NSTAT=5, DYN=0, BAR=0, REMAP=0, PRIO=0, D2=1, F=-1, KL=1, CW=1, KV=0, DRY=0)
for a in sys.argv[2:]:
    k, v = a.split("="); opts[k] = int(v) if v.lstrip("-").isdigit() else v
TS = opts["TS"]; NT = opts["NT"]
L = []
def o(s): L.append("    " + s)
def lab(s): L.append(s + ":")
def c(s): L.append("    ; " + s)
SAK, SAV, SBK, SBV, SWQ, SWO, SX, SWS, SDBG, SOUT, SGW = 4, 8, 12, 16, 20, 24, 28, 32, 64, 68, 72
sH, sB, sW = 76, 77, 78
sT0, sT1, sT2, sT3 = 79, 80, 81, 82
sSEL0, sSEL1, sSCALE, sLOG2E, sOFF, sOFF2, sCNT, sSPIN = 83, 84, 85, 86, 87, 88, 89, 90
TSR = list(range(92,102))+[36,37,38,39]
def srd(r): return f"s[{r}:{r+3}]"
vLANE, vG, vC, vOK, vOV = 1, 2, 3, 4, 5
vT = list(range(6, 16))
vM, vL, vAL, vAL1 = 16, 17, 18, 19
S0, P0, Q0, ACC, VT, KB, VB, XT = 20, 28, 32, 48, 80, 96, 128, 160
def vr(b, n): return f"v[{b}:{b+n-1}]"
BML = 0; ACOMB = 512; AML = ACOMB + 4096
B2D = 4096 + 64; QS = ACOMB + 2 * B2D; GATE = QS + 2304
CNT = GATE + 64; QA = CNT + 64
QRED = BCOMB = ORED = QA + 4096; LDS_BYTES = QRED + 33792
assert QRED % 16 == 0
QP, BPO, BPML, OI, PI, TSO = 0, 0x100000, 0x200000, 0x210000, 0x300000, 0x400000
WS_BYTES = 0x410000
EPO = 0x280000
sEP = 52
OOB = 0x7ffffff0
nstamp = [0]
sTC = 51
uid = [0]
def U(p): uid[0] += 1; return f"L_{p}{uid[0]}"
def stamp():
    if not TS: return
    i = nstamp[0]; nstamp[0] += 1
    assert i < 14
    o("s_memrealtime s[2:3]"); o("s_waitcnt lgkmcnt(0)"); o(f"s_mov_b32 s{TSR[i]}, s2")
def mksrd(r, ptr, nbytes, offreg=None):
    if offreg is None:
        o(f"s_mov_b32 s{r}, s{ptr}"); o(f"s_and_b32 s{r+1}, s{ptr+1}, 0xffff")
    else:
        o(f"s_add_u32 s{r}, s{ptr}, s{offreg}"); o(f"s_addc_u32 s{r+1}, s{ptr+1}, 0"); o(f"s_and_b32 s{r+1}, s{r+1}, 0xffff")
    o(f"s_mov_b32 s{r+2}, {hex(nbytes)}"); o(f"s_mov_b32 s{r+3}, 0x00020000")
def loadK(sr, dst=KB):
    if opts["KV"] and sr == SAK: return loadV(sr, dst)
    for t in range(2):
        for j in range(4):
            o(f"buffer_load_dwordx4 {vr(dst+t*16+j*4,4)}, v{vOK}, {srd(sr)}, s{sOFF if t==0 else sOFF2} offen offset:{j*64} {NT}")
def loadV(sr, dst=VB):
    for i in range(8):
        o(f"buffer_load_dwordx4 {vr(dst+i*4,4)}, v{vOV}, {srd(sr)}, s{sOFF if i<4 else sOFF2} offen offset:{(i&3)*1024} {NT}")
def pv(src, pb, first=False):
    def perms(e):
        w_, hb = e >> 1, e & 1
        for u in range(4):
            o(f"v_perm_b32 v{VT+(e&3)*4+u}, v{src+(2*u+1)*4+w_}, v{src+(2*u)*4+w_}, s{sSEL1 if hb else sSEL0}")
    perms(0)
    for e in range(8):
        if e + 1 < 8: perms(e + 1)
        else: o("s_nop 1")
        cc = "0" if first else vr(ACC+e*4, 4)
        o(f"v_mfma_f32_16x16x32_bf16 {vr(ACC+e*4,4)}, {vr(VT+(e&3)*4,4)}, {vr(pb,4)}, {cc}")
def xmax(v, t, op="v_max_f32"):
    for sw in ("v_permlane32_swap_b32", "v_permlane16_swap_b32"):
        o(f"v_mov_b32 v{t}, v{v}"); o("s_nop 1"); o(f"{sw} v{t}, v{v}"); o("s_nop 0"); o(f"{op} v{v}, v{t}, v{v}")
def rnd2(a, b, t):
    o(f"v_cvt_pk_bf16_f32 v{t}, v{a}, v{b}"); o(f"v_lshlrev_b32 v{a}, 16, v{t}"); o(f"v_and_b32 v{b}, 0xffff0000, v{t}")
def fair():
    l1, l2 = U("pl"), U("pd")
    o(f"s_add_u32 s{sTC}, s{sTC}, 1"); o(f"s_lshl_b32 s{sT0}, s{sW}, 2"); o(f"s_xor_b32 s{sT1}, s{sT0}, 16")
    o(f"v_mov_b32 v{vT[0]}, s{sT0}"); o(f"v_mov_b32 v{vT[1]}, s{sT1}"); o(f"v_mov_b32 v{vT[2]}, s{sTC}")
    o(f"ds_write_b32 v{vT[0]}, v{vT[2]} offset:{CNT+16}"); o(f"ds_read_b32 v{vT[1]}, v{vT[1]} offset:{CNT+16}")
    o("s_waitcnt lgkmcnt(0)"); o(f"v_readfirstlane_b32 s{sT0}, v{vT[1]}")
    o(f"s_cmp_gt_u32 s{sTC}, s{sT0}"); o(f"s_cbranch_scc1 {l1}"); o("s_setprio 1"); o(f"s_branch {l2}"); lab(l1); o("s_setprio 0"); lab(l2)
def tile(nextK, nextV, wK=8, wV=8, prio=True, ks=KB, vs=VB):
    if opts["BAR"]: o("s_barrier")
    o(f"s_waitcnt vmcnt({wK})")
    for j in range(4):
        for t in range(2):
            cc = "0" if j == 0 else vr(S0+t*4, 4)
            o(f"v_mfma_f32_16x16x32_bf16 {vr(S0+t*4,4)}, {vr(ks+t*16+j*4,4)}, {vr(Q0+j*4,4)}, {cc}")
    n0 = len(L); nextK(); n = len(L) - n0
    if n < 8: o(f"s_nop {8-n-1}")
    for i in range(4): rnd2(S0+2*i, S0+2*i+1, vT[i])
    for i in range(8): o(f"v_mul_f32 v{S0+i}, s{sSCALE}, v{S0+i}")
    for i in range(4): rnd2(S0+2*i, S0+2*i+1, vT[i])
    mx = vT[4]
    o(f"v_max3_f32 v{mx}, v{S0}, v{S0+1}, v{S0+2}"); o(f"v_max3_f32 v{vT[5]}, v{S0+3}, v{S0+4}, v{S0+5}")
    o(f"v_max3_f32 v{mx}, v{mx}, v{S0+6}, v{S0+7}"); o(f"v_max3_f32 v{mx}, v{mx}, v{vT[5]}, v{vM}")
    xmax(mx, vT[5])
    o(f"v_sub_f32 v{vAL}, v{vM}, v{mx}"); o(f"v_mov_b32 v{vM}, v{mx}")
    o(f"v_mul_f32 v{vAL}, s{sLOG2E}, v{vAL}")
    for i in range(8): o(f"v_sub_f32 v{S0+i}, v{S0+i}, v{vM}")
    o(f"v_exp_f32 v{vAL}, v{vAL}")
    for i in range(8): o(f"v_mul_f32 v{S0+i}, s{sLOG2E}, v{S0+i}")
    for i in range(8): o(f"v_exp_f32 v{S0+i}, v{S0+i}")
    for i in range(16): o(f"v_pk_mul_f32 {vr(ACC+2*i,2)}, {vr(ACC+2*i,2)}, {vr(vAL,2)} op_sel_hi:[1,0]")
    for i in range(4): o(f"v_cvt_pk_bf16_f32 v{P0+i}, v{S0+2*i}, v{S0+2*i+1}")
    o(f"v_add_f32 v{vT[0]}, v{S0}, v{S0+1}"); o(f"v_add_f32 v{vT[1]}, v{S0+2}, v{S0+3}")
    o(f"v_add_f32 v{vT[2]}, v{S0+4}, v{S0+5}"); o(f"v_add_f32 v{vT[3]}, v{S0+6}, v{S0+7}")
    o(f"v_add_f32 v{vT[0]}, v{vT[0]}, v{vT[1]}"); o(f"v_add_f32 v{vT[2]}, v{vT[2]}, v{vT[3]}")
    o(f"v_add_f32 v{vT[0]}, v{vT[0]}, v{vT[2]}"); o(f"v_fma_f32 v{vL}, v{vL}, v{vAL}, v{vT[0]}")
    o(f"s_waitcnt vmcnt({wV})")
    pv(vs, P0)
    nextV()
    if opts["PRIO"] and prio: fair()
def setoff(expr_reg_or_none, add):
    if add: o(f"s_add_u32 s{sOFF}, s{sOFF}, {hex(add)}")
    o(f"s_add_u32 s{sOFF2}, s{sOFF}, 0x1000")
def initsm():
    o(f"v_mov_b32 v{vM}, 0xff7fffff"); o(f"v_mov_b32 v{vL}, 0")
    for i in range(32): o(f"v_mov_b32 v{ACC+i}, 0")
def loadQ(base_expr_v):
    for j in range(4): o(f"ds_read_b128 {vr(Q0+j*4,4)}, v{base_expr_v} offset:{QS+j*64}")
    o("s_waitcnt lgkmcnt(0)")
def combine(vaddr, vstride, vml, mlstride, pairmode):
    ml = XT + 2; val = XT + 18
    for w in range(8): o(f"ds_read_b64 {vr(ml+2*w,2)}, v{vml} offset:{w*mlstride}")
    for w in range(8):
        if pairmode: o(f"ds_read_b64 {vr(val+2*w,2)}, v{vaddr} offset:{w*vstride}")
        else:
            o(f"v_add_u32 v{vT[0]}, {w*vstride}, v{vaddr}")
            o(f"ds_read2_b32 {vr(val+2*w,2)}, v{vT[0]} offset0:0 offset1:16")
    o("s_waitcnt lgkmcnt(8)")
    o(f"v_max3_f32 v{vM}, v{ml}, v{ml+2}, v{ml+4}"); o(f"v_max3_f32 v{vM}, v{vM}, v{ml+6}, v{ml+8}")
    o(f"v_max3_f32 v{vM}, v{vM}, v{ml+10}, v{ml+12}"); o(f"v_max_f32 v{vM}, v{vM}, v{ml+14}")
    for w in range(8): o(f"v_sub_f32 v{ml+2*w}, v{ml+2*w}, v{vM}")
    for w in range(8): o(f"v_mul_f32 v{ml+2*w}, s{sLOG2E}, v{ml+2*w}")
    for w in range(8): o(f"v_exp_f32 v{ml+2*w}, v{ml+2*w}")
    o("s_waitcnt lgkmcnt(0)")
    o(f"v_mul_f32 v{vL}, v{ml}, v{ml+1}"); o(f"v_mul_f32 v{XT}, v{ml}, v{val}"); o(f"v_mul_f32 v{XT+1}, v{ml}, v{val+1}")
    for w in range(1, 8):
        o(f"v_fmac_f32 v{vL}, v{ml+2*w}, v{ml+2*w+1}"); o(f"v_fmac_f32 v{XT}, v{ml+2*w}, v{val+2*w}"); o(f"v_fmac_f32 v{XT+1}, v{ml+2*w}, v{val+2*w+1}")
def spin_tail(label, done):
    o(f"s_cbranch_vccz {done}")
    o(f"s_sub_u32 s{sSPIN}, s{sSPIN}, 1"); o(f"s_cbranch_scc1 {done}")
    o("s_sleep 1"); o(f"s_branch {label}")
    lab(done)

SWQB = 44
sKN, sBD = 48, 49
NSTAT = opts["NSTAT"]; WQNT = opts["WQNT"]
def lds_ctr(op, off, rd):
    o(f"v_mov_b32 v{vT[0]}, 0"); o(f"v_mov_b32 v{vT[1]}, 1"); o("s_mov_b64 exec, 1")
    if op == "add": o(f"ds_add_u32 v{vT[0]}, v{vT[1]} offset:{off}")
    elif op == "addr": o(f"ds_add_rtn_u32 v{vT[2]}, v{vT[0]}, v{vT[1]} offset:{off}")
    else: o(f"ds_read_b32 v{vT[2]}, v{vT[0]} offset:{off}")
    o("s_mov_b64 exec, -1")
    if rd is not None: o("s_waitcnt lgkmcnt(0)"); o(f"v_readfirstlane_b32 s{rd}, v{vT[2]}")
def decide_dyn(bdone_known):
    dn, fin, isb, nb = U("dn"), U("fin"), U("isb"), U("nb")
    if not bdone_known:
        o(f"s_cmp_lg_u32 s{sBD}, 0"); o(f"s_cbranch_scc1 {nb}")
        lds_ctr("rd", CNT+4, sT0); o(f"s_cmp_ge_u32 s{sT0}, 8"); o(f"s_cbranch_scc1 {isb}")
        lab(nb)
    if opts["DYN"]:
        lds_ctr("addr", CNT+12, sT0); o(f"s_add_u32 s{sT0}, s{sT0}, {NSTAT*8}")
    else:
        o(f"s_add_u32 s50, s50, {8 if opts['F'] < 0 else 4}"); o(f"s_mov_b32 s{sT0}, s50")
    o(f"s_cmp_ge_u32 s{sT0}, s56"); o(f"s_cbranch_scc1 {fin}")
    o(f"s_mov_b32 s{sKN}, 0"); o(f"s_lshl_b32 s{sOFF}, s{sT0}, 13"); o(f"s_branch {dn}")
    lab(fin)
    if not bdone_known:
        f2, sp = U("f2"), U("sp")
        o(f"s_cmp_lg_u32 s{sBD}, 0"); o(f"s_cbranch_scc1 {f2}")
        lab(sp)
        lds_ctr("rd", CNT+4, sT0); o(f"s_cmp_ge_u32 s{sT0}, 8"); o(f"s_cbranch_scc1 {isb}")
        o(f"s_sub_u32 s{sSPIN}, s{sSPIN}, 1"); o(f"s_cbranch_scc1 {isb}"); o("s_sleep 2"); o(f"s_branch {sp}")
        lab(isb)
        o(f"s_mov_b32 s{sKN}, 1"); o(f"s_lshl_b32 s{sOFF}, s{sW}, 13"); o(f"s_branch {dn}")
        lab(f2)
    o(f"s_mov_b32 s{sKN}, 2"); o(f"s_add_u32 s{sT0}, s{sW}, 120"); o(f"s_lshl_b32 s{sOFF}, s{sT0}, 13")
    lab(dn)
    setoff(None, 0)
def sel_load(fn, a, b_):
    l1, l2 = U("sb"), U("sd")
    o(f"s_cmp_eq_u32 s{sKN}, 1"); o(f"s_cbranch_scc1 {l1}"); fn(a); o(f"s_branch {l2}"); lab(l1); fn(b_); lab(l2)

o("s_cmp_ge_u32 s2, 256"); o("s_cbranch_scc1 L_end")
o("s_load_dwordx16 s[36:51], s[0:1], 0"); o("s_load_dwordx8 s[52:59], s[0:1], 64"); o("s_load_dwordx4 s[60:63], s[0:1], 96")
if opts["REMAP"]:
    o(f"s_and_b32 s{sH}, s2, 7"); o(f"s_lshl_b32 s{sH}, s{sH}, 2"); o(f"s_bfe_u32 s{sB}, s2, 0x20003"); o(f"s_or_b32 s{sH}, s{sH}, s{sB}")
    o(f"s_lshr_b32 s{sB}, s2, 5"); o(f"s_andn2_b32 s2, s2, 31"); o(f"s_or_b32 s2, s2, s{sH}")
else:
    o(f"s_and_b32 s{sH}, s2, 31"); o(f"s_lshr_b32 s{sB}, s2, 5")
o(f"v_lshrrev_b32 v{vT[0]}, 6, v0"); o(f"v_and_b32 v{vLANE}, 63, v0")
o(f"v_readfirstlane_b32 s{sW}, v{vT[0]}")
o(f"v_lshrrev_b32 v{vG}, 4, v{vLANE}"); o(f"v_and_b32 v{vC}, 15, v{vLANE}")
o(f"s_mov_b32 s91, s2")
c("x operand offsets / wq offsets")
o(f"v_and_b32 v{vT[3]}, 7, v{vC}"); o(f"v_lshlrev_b32 v{vT[3]}, 11, v{vT[3]}"); o(f"v_lshl_add_u32 v{vT[3]}, v{vG}, 4, v{vT[3]}")
o(f"v_lshlrev_b32 v{vT[5]}, 16, v{vG}"); o(f"v_lshl_add_u32 v{vT[5]}, v{vC}, 4, v{vT[5]}")
o(f"v_lshlrev_b32 v{vOV}, 4, v{vLANE}")
o(f"s_and_b32 s{sT0}, s{sB}, 3"); o(f"s_lshl_b32 s{sT0}, s{sT0}, 8"); o(f"s_lshl_b32 s{sT1}, s{sW}, 5"); o(f"s_add_u32 s{sT0}, s{sT0}, s{sT1}")
o(f"s_lshl_b32 s{sT1}, s{sT0}, 1"); o(f"s_lshl_b32 s{sT0}, s{sT0}, 13"); o(f"s_lshl_b32 s{sOFF}, s{sH}, 8"); o(f"s_add_u32 s{sT0}, s{sT0}, s{sOFF}")
o(f"s_cmp_lt_u32 s{sB}, 4")
o("s_waitcnt lgkmcnt(0)")
o(f"s_cselect_b32 s{sT2}, s42, s52"); o(f"s_cselect_b32 s{sT3}, s43, s53")
stamp()
mksrd(SWQ, sT2, 0x800000); mksrd(SX, 36, 16384)
for i in range(8):
    o(f"buffer_load_dwordx4 {vr(XT+i*4,4)}, v{vT[5]}, {srd(SWQ)}, s{sT0} offen {NT}")
    if i < 7: o(f"s_add_u32 s{sT0}, s{sT0}, 0x2000")
o(f"buffer_load_dwordx4 {vr(P0,4)}, v{vT[3]}, {srd(SX)}, s{sT1} offen")
o(f"s_mov_b32 s53, {hex(EPO)}"); o(f"s_load_dword s{sEP}, s[62:63], s53")
mksrd(SWS, 62, WS_BYTES)
c("---- sentinel clears of this WG's own outboxes; zero LDS counters")
CL = ACC
for i in range(4): o(f"v_mov_b32 v{CL+i}, -1")
for i in range(4): o(f"v_mov_b32 v{CL+4+i}, 0")
o(f"ds_write_b128 v{CL+4}, {vr(CL+4,4)} offset:{CNT}"); o(f"ds_write_b128 v{CL+4}, {vr(CL+4,4)} offset:{CNT+16}"); o(f"ds_write_b128 v{CL+4}, {vr(CL+4,4)} offset:{CNT+32}")
o(f"s_lshl_b32 s{sT0}, s91, 3"); o(f"s_add_u32 s{sT0}, s{sT0}, s{sW}"); o(f"s_lshl_b32 s{sT0}, s{sT0}, 9"); o(f"s_add_u32 s{sT0}, s{sT0}, {hex(PI)}")
o(f"s_and_b32 s{sT1}, s91, 0xf8"); o(f"s_add_u32 s{sT1}, s{sT1}, s{sW}"); o(f"s_lshl_b32 s{sT1}, s{sT1}, 3"); o(f"s_and_b32 s{sT2}, s91, 7"); o(f"s_add_u32 s{sT1}, s{sT1}, s{sT2}")
o(f"s_lshl_b32 s{sT1}, s{sT1}, 9"); o(f"s_add_u32 s{sT1}, s{sT1}, {hex(BPO-512)}")
o(f"v_mov_b32 v{vT[0]}, s{sT0}"); o(f"v_mov_b32 v{vT[1]}, s{sT1}"); o(f"v_cmp_gt_u32 vcc, 32, v{vLANE}"); o("s_nop 1")
o(f"v_cndmask_b32 v{vT[0]}, v{vT[1]}, v{vT[0]}, vcc"); o(f"v_add_u32 v{vT[0]}, v{vT[0]}, v{vOV}")
o(f"buffer_store_dwordx4 {vr(CL,4)}, v{vT[0]}, {srd(SWS)}, 0 offen sc1")
o(f"s_lshr_b32 s{sT0}, s{sW}, 2"); o(f"s_lshl_b32 s{sT2}, s{sH}, 1"); o(f"s_add_u32 s{sT0}, s{sT0}, s{sT2}"); o(f"s_lshl_b32 s{sT0}, s{sT0}, 3"); o(f"s_add_u32 s{sT0}, s{sT0}, s{sB}")
o(f"s_lshl_b32 s{sT0}, s{sT0}, 8"); o(f"s_and_b32 s{sT2}, s{sW}, 3"); o(f"s_lshl_b32 s{sT2}, s{sT2}, 6"); o(f"s_add_u32 s{sT0}, s{sT0}, s{sT2}"); o(f"s_add_u32 s{sT0}, s{sT0}, {hex(OI)}")
o(f"s_sub_u32 s{sT1}, s{sT1}, {hex(BPO-512)}"); o(f"s_lshr_b32 s{sT1}, s{sT1}, 5"); o(f"s_add_u32 s{sT1}, s{sT1}, {hex(BPML)}")
o(f"v_add_u32 v{vT[0]}, s{sT0}, v{vOV}"); o(f"v_mov_b32 v{vT[1]}, s{sT1}"); o(f"v_mov_b32 v{vT[2]}, {hex(OOB)}")
o(f"v_cmp_eq_u32 vcc, 4, v{vLANE}"); o("s_nop 1"); o(f"v_cndmask_b32 v{vT[1]}, v{vT[2]}, v{vT[1]}, vcc")
o(f"v_cmp_gt_u32 vcc, 4, v{vLANE}"); o("s_nop 1"); o(f"v_cndmask_b32 v{vT[0]}, v{vT[1]}, v{vT[0]}, vcc")
o(f"buffer_store_dwordx4 {vr(CL,4)}, v{vT[0]}, {srd(SWS)}, 0 offen sc1")

o(f"s_lshl_b32 s{sT0}, s91, 20"); o(f"s_lshl_b32 s{sT1}, s91, 17")
mksrd(SAK, 38, 0x100000, sT0)
o(f"v_and_b32 v{vT[0]}, 3, v{vC}"); o(f"v_lshrrev_b32 v{vT[1]}, 2, v{vC}"); o(f"v_lshl_add_u32 v{vT[0]}, v{vT[0]}, 2, v{vT[1]}")
o(f"v_lshlrev_b32 v{vT[0]}, 8, v{vT[0]}"); o(f"v_lshl_add_u32 v{vOK}, v{vG}, 4, v{vT[0]}")
o(f"s_lshl_b32 s{sOFF}, s{sW}, 13"); setoff(None, 0)
if not opts["KL"]: loadK(SAK)
mksrd(SAV, 40, 0x100000, sT0); mksrd(SBK, 48, 0x20000, sT1); mksrd(SBV, 50, 0x20000, sT1)
o(f"s_cmp_lt_u32 s{sW}, 4"); o(f"s_cselect_b32 s{sT2}, s44, s54"); o(f"s_cselect_b32 s{sT3}, s45, s55")
mksrd(SWO, sT2, 0x800000)
mksrd(SGW, 56, 2048); mksrd(SDBG, 60, 256); mksrd(SOUT, 58, 16384)
o(f"s_mov_b32 s{sSEL0}, 0x05040100"); o(f"s_mov_b32 s{sSEL1}, 0x07060302")
o(f"s_mov_b32 s{sSCALE}, 0x3db504f3"); o(f"s_mov_b32 s{sLOG2E}, 0x3fb8aa3b"); o(f"s_mov_b32 s{sSPIN}, {opts['SPIN']}")
o(f"s_mov_b32 s{sKN}, 0"); o(f"s_mov_b32 s{sBD}, 0"); o(f"s_add_u32 s50, s{sW}, {NSTAT*8-8}"); o(f"s_mov_b32 s{sTC}, 0")
o("s_mov_b32 s56, 120")
if opts["F"] >= 0:
    FL = NSTAT*8 + 4*opts["F"]
    assert FL <= 120
    o(f"s_add_u32 s50, s{sW}, {FL-4}"); o(f"s_add_u32 s57, s{sW}, {NSTAT*8-8}")
    o(f"s_cmp_lt_u32 s{sW}, 4"); o(f"s_cselect_b32 s50, s50, s57"); o(f"s_cselect_b32 s56, s56, {FL}")
o(f"s_mov_b32 s44, 0x07060500"); o(f"s_mov_b32 s45, 0x07060501"); o(f"s_mov_b32 s46, 0x07060502"); o(f"s_mov_b32 s47, 0x07060503")
o(f"s_mov_b32 s54, 0x0c0c0400"); o(f"s_mov_b32 s55, 0x04000c0c")
c("persistent LDS bases")
o(f"s_mul_i32 s{sT0}, s{sW}, 4224"); o(f"v_mul_u32_u24 v{vT[6]}, 528, v{vC}"); o(f"v_add_u32 v{vT[6]}, s{sT0}, v{vT[6]}")
o(f"v_lshl_add_u32 v{vT[6]}, v{vG}, 4, v{vT[6]}")
c("reduce address: QRED + half*4*4224 + w*528 + (l&31)*16 ; publish offset")
o(f"v_lshrrev_b32 v{vT[0]}, 5, v{vLANE}"); o(f"v_mul_u32_u24 v{vT[1]}, {4*4224}, v{vT[0]}"); o(f"v_and_b32 v{vT[2]}, 31, v{vLANE}"); o(f"v_lshlrev_b32 v{vT[2]}, 4, v{vT[2]}")
o(f"s_mul_i32 s{sT0}, s{sW}, 528"); o(f"v_add3_u32 v{vT[1]}, v{vT[1]}, v{vT[2]}, s{sT0}")
o(f"v_lshl_add_u32 v{vT[7]}, v{vT[0]}, 13, v{vT[2]}")
o(f"v_mov_b32 v{vT[3]}, {hex(OOB)}"); o(f"v_cmp_gt_u32 vcc, 32, v{vLANE}"); o("s_nop 1"); o(f"v_cndmask_b32 v{vT[2]}, v{vT[3]}, v{vT[2]}, vcc")
o(f"s_lshr_b32 s{sT0}, s{sB}, 2"); o(f"s_lshl_b32 s{sT0}, s{sT0}, 5"); o(f"s_add_u32 s{sT0}, s{sT0}, s{sH}"); o(f"s_lshl_b32 s{sT0}, s{sT0}, 2")
o(f"s_and_b32 s{sT1}, s{sB}, 3"); o(f"s_add_u32 s{sT0}, s{sT0}, s{sT1}"); o(f"s_lshl_b32 s{sT0}, s{sT0}, 12"); o(f"s_lshl_b32 s{sT1}, s{sW}, 9"); o(f"s_add_u32 s{sT0}, s{sT0}, s{sT1}")
o(f"s_waitcnt vmcnt({2 if opts['KL'] else 10}) lgkmcnt(0)")
if opts["KL"] == 2: loadK(SAK)
o(f"s_xor_b32 s53, s{sEP}, 0x5bd1e995"); o(f"v_mov_b32 v{vAL1}, s53")
stamp()
pv(XT, P0, first=True)
o("s_mov_b32 exec_lo, 0x00ff00ff"); o("s_mov_b32 exec_hi, 0x00ff00ff"); o("s_nop 5")
for e in range(8): o(f"ds_write_b128 v{vT[6]}, {vr(ACC+e*4,4)} offset:{QRED+e*64}")
o("s_mov_b64 exec, -1")
if opts["KL"] == 1: loadK(SAK)
o("s_waitcnt lgkmcnt(0)" if opts["CW"] else "s_waitcnt vmcnt(8) lgkmcnt(0)"); o("s_barrier")
stamp()
for k in range(4): o(f"ds_read_b128 {vr(XT+4*k,4)}, v{vT[1]} offset:{QRED+k*4224}")
o("s_waitcnt lgkmcnt(0)")
def red4(b0, n):
    st = n // 2
    while st:
        for k in range(4*st): o(f"v_add_f32 v{b0+k}, v{b0+k}, v{b0+4*st+k}")
        st //= 2
    for k in range(4): o(f"v_mov_b32 v{b0+4+k}, v{b0+k}")
    o("s_nop 0")
    for k in range(4): o(f"v_permlane32_swap_b32 v{b0+4+k}, v{b0+k}")
    o("s_nop 0")
    for k in range(4): o(f"v_add_f32 v{b0+k}, v{b0+k}, v{b0+4+k}")
red4(XT, 4)
for k in range(4): o(f"v_perm_b32 v{XT+k}, v{XT+k}, v{vAL1}, s{44+k}")
o(f"buffer_store_dwordx4 {vr(XT,4)}, v{vT[2]}, {srd(SWS)}, s{sT0} offen sc1")
if opts["KL"] == 3: loadK(SAK)
o("s_barrier")
if opts["KL"] == 4: loadK(SAK)
stamp()
XK, XV = XT, XT + 32
def pre_rest(v0=True):
    if v0: loadV(SAV)
    if opts["D2"]: setoff(None, 0x10000); loadK(SAK, XK); loadV(SAV, XV)
    setoff(None, 0x10000)
o(f"s_cmp_eq_u32 s{sW}, 0"); o("s_cbranch_scc1 L_w0")
o("s_nop 0")
pre_rest()
if opts["CW"]: o(f"s_waitcnt vmcnt({24 if opts['D2'] else 8})")
o("s_barrier"); o("s_branch L_go")
lab("L_w0")
o(f"v_mov_b32 v{vT[3]}, {hex(OOB)}"); o(f"v_mov_b32 v{vT[5]}, s91"); o(f"v_cmp_eq_u32 vcc, 0, v{vLANE}"); o(f"v_mov_b32 v{vT[4]}, 1")
o(f"v_cndmask_b32 v{vT[3]}, v{vT[3]}, v{vT[5]}, vcc")
o(f"s_lshl_b32 s{sT1}, s{sB}, 9"); o(f"s_lshl_b32 s{sT0}, s{sH}, 14"); o(f"s_add_u32 s{sT0}, s{sT0}, s{sT1}"); o(f"s_add_u32 s{sT2}, s{sT0}, 0x1000")
o(f"v_and_b32 v{vT[1]}, 3, v{vLANE}"); o(f"v_lshlrev_b32 v{vT[1]}, 6, v{vT[1]}"); o(f"v_bfe_u32 v{vT[2]}, v{vLANE}, 2, 3"); o(f"v_lshl_add_u32 v{vT[1]}, v{vT[2]}, 1, v{vT[1]}")
def tagchk(b0, first):
    o(f"v_perm_b32 v{vT[8]}, v{b0+1}, v{b0}, s54"); o(f"v_perm_b32 v{vT[9]}, v{b0+3}, v{b0+2}, s55")
    o(f"v_or_b32 v{vT[8]}, v{vT[8]}, v{vT[9]}")
    if first: o(f"v_xor_b32 v{vT[0]}, v{vT[8]}, v{vAL1}")
    else: o(f"v_xor_b32 v{vT[8]}, v{vT[8]}, v{vAL1}"); o(f"v_or_b32 v{vT[0]}, v{vT[0]}, v{vT[8]}")
def qwrite(b0, off):
    o(f"v_cvt_pk_bf16_f32 v{b0}, v{b0}, v{b0+1}"); o(f"v_cvt_pk_bf16_f32 v{b0+1}, v{b0+2}, v{b0+3}")
    o(f"ds_write_b16 v{vT[1]}, v{b0} offset:{off}"); o(f"ds_write_b16_d16_hi v{vT[1]}, v{b0} offset:{off+16}")
    o(f"ds_write_b16 v{vT[1]}, v{b0+1} offset:{off+32}"); o(f"ds_write_b16_d16_hi v{vT[1]}, v{b0+1} offset:{off+48}")
QT = XT + 64
lab("L_pollQ")
o(f"buffer_load_dwordx4 {vr(QT,4)}, v{vT[7]}, {srd(SWS)}, s{sT0} offen sc1"); o(f"buffer_load_dwordx4 {vr(QT+4,4)}, v{vT[7]}, {srd(SWS)}, s{sT2} offen sc1")
o("s_waitcnt vmcnt(0)")
tagchk(QT, True); tagchk(QT+4, False)
o(f"v_cmp_ne_u32 vcc, 0, v{vT[0]}")
spin_tail("L_pollQ", "L_pollQ_done")
for k in range(8): o(f"v_and_b32 v{QT+k}, 0xffffff00, v{QT+k}")
red4(QT, 2); qwrite(QT, QS)
o("s_waitcnt lgkmcnt(0)"); o("s_barrier")
stamp()
o(f"buffer_store_byte v{vT[4]}, v{vT[3]}, {srd(SDBG)}, 0 offen sc1")
loadV(SAV)
lab("L_pollQB")
o(f"s_and_b32 s{sT0}, s{sH}, 0x18"); o(f"s_add_u32 s{sT0}, s{sT0}, 32"); o(f"s_lshl_b32 s{sT0}, s{sT0}, 14"); o(f"s_add_u32 s{sT0}, s{sT0}, s{sT1}")
for v in range(8):
    o(f"s_add_u32 s{sT2}, s{sT0}, 0x1000")
    o(f"buffer_load_dwordx4 {vr(XT+v*8,4)}, v{vT[7]}, {srd(SWS)}, s{sT0} offen sc1"); o(f"buffer_load_dwordx4 {vr(XT+v*8+4,4)}, v{vT[7]}, {srd(SWS)}, s{sT2} offen sc1")
    if v < 7: o(f"s_add_u32 s{sT0}, s{sT0}, 0x4000")
o("s_waitcnt vmcnt(0)")
for v in range(16): tagchk(XT+4*v, v == 0)
o(f"v_cmp_ne_u32 vcc, 0, v{vT[0]}")
spin_tail("L_pollQB", "L_pollQB_done")
for k in range(64): o(f"v_and_b32 v{XT+k}, 0xffffff00, v{XT+k}")
for v in range(8): red4(XT+8*v, 2); qwrite(XT+8*v, QS+256+256*v)
o(f"v_mov_b32 v{vT[0]}, 0"); o(f"v_mov_b32 v{vT[2]}, 8"); o(f"ds_write_b32 v{vT[0]}, v{vT[2]} offset:{CNT+4}")
o("s_waitcnt lgkmcnt(0)")
pre_rest(False)
lab("L_go")
o(f"v_lshlrev_b32 v{vT[8]}, 4, v{vG}")
loadQ(vT[8]); initsm()
stamp()
if opts["D2"]:
    tile(lambda: loadK(SAK), lambda: loadV(SAV), wK=24, wV=24)
    tile(lambda: None, lambda: o("s_nop 7"), wK=24, wV=16, ks=XK, vs=XV)
    setoff(None, 0x10000); o(f"s_mov_b32 s{sCNT}, 2")
else: o(f"s_mov_b32 s{sCNT}, 0"); o(f"v_lshlrev_b32 v{XT+49}, 2, v{vLANE}")
c("---- main loop over A tiles")
lab("L_A")
tile(lambda: sel_load(loadK, SAK, SBK), lambda: sel_load(loadV, SAV, SBV))
o(f"s_cmp_lt_u32 s{sCNT}, {NSTAT-1}"); o("s_cbranch_scc1 L_extra")
o(f"s_cmp_eq_u32 s{sKN}, 1"); o("s_cbranch_scc1 L_B")
lab("L_A2")
o(f"s_cmp_eq_u32 s{sKN}, 2"); o("s_cbranch_scc1 L_last")
lab("L_A3")
decide_dyn(False)
o("s_branch L_A")
c("---- extras in the static phase")
lab("L_extra")
o(f"s_cmp_eq_u32 s{sCNT}, {NSTAT-3}"); o("s_cbranch_scc1 L_E2")
o(f"s_cmp_eq_u32 s{sCNT}, {NSTAT-2}"); o("s_cbranch_scc1 L_E3")
lab("L_Eret")
o(f"s_add_u32 s{sCNT}, s{sCNT}, 1"); o(f"s_add_u32 s{sOFF}, s{sOFF}, 0x10000"); setoff(None, 0); o("s_branch L_A")
lab("L_E2")
c("issue flag load + gate inputs")
GX = XT + 16
o(f"v_lshlrev_b32 v{XT+49}, 2, v{vLANE}")
o(f"buffer_load_dword v{XT+48}, v{XT+49}, {srd(SDBG)}, 0 offen sc1")
o(f"v_lshlrev_b32 v{vT[4]}, 5, v{vLANE}"); o(f"s_lshl_b32 s{sT1}, s{sW}, 11")
o(f"buffer_load_dwordx4 {vr(GX,4)}, v{vT[4]}, {srd(SX)}, s{sT1} offen"); o(f"buffer_load_dwordx4 {vr(GX+4,4)}, v{vT[4]}, {srd(SX)}, s{sT1} offen offset:16")
o(f"buffer_load_dwordx4 {vr(GX+8,4)}, v{vT[4]}, {srd(SGW)}, 0 offen"); o(f"buffer_load_dwordx4 {vr(GX+12,4)}, v{vT[4]}, {srd(SGW)}, 0 offen offset:16")
o("s_branch L_Eret")
lab("L_E3")
o(f"s_mov_b32 s{sT0}, 0x01010101")
lab("L_poll0")
o(f"v_cmp_ne_u32 vcc, s{sT0}, v{XT+48}"); o("s_cbranch_vccz L_poll0_done")
o(f"s_sub_u32 s{sSPIN}, s{sSPIN}, 1"); o("s_cbranch_scc1 L_poll0_done"); o("s_sleep 8")
o(f"buffer_load_dword v{XT+48}, v{XT+49}, {srd(SDBG)}, 0 offen sc1"); o("s_waitcnt vmcnt(0)"); o("s_branch L_poll0")
lab("L_poll0_done")
stamp()
c("gate for batch w: sigmoid(bf16(sum(bf16(x*gw))))")
for i in range(8):
    a, b_ = GX+16+2*i, GX+17+2*i
    o(f"v_lshlrev_b32 v{vT[0]}, 16, v{GX+i}"); o(f"v_lshlrev_b32 v{vT[1]}, 16, v{GX+8+i}"); o(f"v_mul_f32 v{a}, v{vT[0]}, v{vT[1]}")
    o(f"v_and_b32 v{vT[0]}, 0xffff0000, v{GX+i}"); o(f"v_and_b32 v{vT[1]}, 0xffff0000, v{GX+8+i}"); o(f"v_mul_f32 v{b_}, v{vT[0]}, v{vT[1]}")
    rnd2(a, b_, vT[2])
    o(f"v_add_f32 v{a}, v{a}, v{b_}")
    if i: o(f"v_add_f32 v{GX+16}, v{GX+16}, v{a}")
gs = GX + 16
for r in (8, 4, 2, 1):
    o("s_nop 1"); o(f"v_add_f32_dpp v{gs}, v{gs}, v{gs} row_ror:{r} row_mask:0xf bank_mask:0xf")
xmax(gs, vT[0], "v_add_f32")
rnd2(gs, gs+1, vT[2])
o(f"v_mul_f32 v{gs}, s{sLOG2E}, v{gs}"); o(f"v_exp_f32 v{gs}, -v{gs}"); o("s_nop 0"); o(f"v_add_f32 v{gs}, 1.0, v{gs}")
o(f"v_rcp_f32 v{gs}, v{gs}"); o("s_nop 0"); rnd2(gs, gs+1, vT[2])
o(f"v_sub_f32 v{gs+1}, 1.0, v{gs}"); rnd2(gs+1, gs+2, vT[2])
o(f"s_lshl_b32 s{sT0}, s{sW}, 3"); o(f"v_mov_b32 v{vT[0]}, s{sT0}"); o(f"ds_write_b64 v{vT[0]}, {vr(gs,2)} offset:{GATE}")
o(f"s_add_u32 s{sCNT}, s{sCNT}, 1")
o("s_branch L_A3")
c("---- branch B: 2 tiles per wave")
lab("L_B")
stamp()
SV = XT + 64
o(f"s_mov_b32 s{sBD}, 1")
o(f"v_and_b32 v{vT[8]}, 7, v{vC}"); o(f"v_lshlrev_b32 v{vT[8]}, 8, v{vT[8]}"); o(f"v_lshl_add_u32 v{vT[8]}, v{vG}, 4, v{vT[8]}"); o(f"v_add_u32 v{vT[8]}, 256, v{vT[8]}")
for i in range(32): o(f"v_mov_b32 v{SV+i}, v{ACC+i}")
o(f"v_mov_b32 v{SV-2}, v{vM}"); o(f"v_mov_b32 v{SV-1}, v{vL}")
loadQ(vT[8]); initsm()
tile(lambda: (setoff(None, 0x10000), loadK(SBK)), lambda: loadV(SBV))
decide_dyn(True)
tile(lambda: loadK(SAK), lambda: loadV(SAV))
c("B epilogue: last arriver combines across waves and publishes")
xmax(vL, vT[0], "v_add_f32")
o(f"s_lshl_b32 s{sT0}, s{sW}, 6"); o(f"v_lshlrev_b32 v{vT[1]}, 3, v{vC}"); o(f"v_add_u32 v{vT[1]}, s{sT0}, v{vT[1]}")
o("s_mov_b32 exec_lo, 0x00ff00ff"); o("s_mov_b32 exec_hi, 0x00ff00ff"); o("s_nop 1")
o(f"ds_write_b64 v{vT[1]}, {vr(vM,2)} offset:{BML}")
for e in range(8): o(f"ds_write_b128 v{vT[6]}, {vr(ACC+e*4,4)} offset:{BCOMB+e*64}")
o("s_mov_b64 exec, -1"); o("s_waitcnt lgkmcnt(0)")
lds_ctr("addr", CNT+8, sT0)
o(f"s_cmp_lg_u32 s{sT0}, 7"); o("s_cbranch_scc1 L_Bdone")
o(f"v_lshlrev_b32 v{vT[2]}, 3, v{vLANE}"); o(f"v_add_u32 v{vT[1]}, {BCOMB}, v{vT[2]}"); o(f"v_mov_b32 v{vT[3]}, {BML}")
o(f"v_mov_b32 v{vT[4]}, {hex(OOB)}"); o(f"v_cmp_eq_u32 vcc, 0, v{vLANE}"); o("s_nop 1"); o(f"v_cndmask_b32 v{vT[4]}, v{vT[4]}, 0, vcc")
o(f"s_and_b32 s{sT1}, s91, 0xf8"); o(f"s_lshl_b32 s{sT1}, s{sT1}, 3"); o(f"s_and_b32 s{sT2}, s91, 7"); o(f"s_add_u32 s{sT1}, s{sT1}, s{sT2}")
o(f"s_lshl_b32 s{sT0}, s{sT1}, 9"); o(f"s_add_u32 s{sT0}, s{sT0}, {hex(BPO)}"); o(f"s_lshl_b32 s{sT1}, s{sT1}, 4"); o(f"s_add_u32 s{sT1}, s{sT1}, {hex(BPML)}")
o(f"s_mov_b32 s{sT2}, 8")
lab("L_Bc")
combine(vT[1], 4224, vT[3], 64, True)
o(f"buffer_store_dwordx2 {vr(XT,2)}, v{vT[2]}, {srd(SWS)}, s{sT0} offen sc1")
o(f"buffer_store_dwordx2 {vr(vM,2)}, v{vT[4]}, {srd(SWS)}, s{sT1} offen sc1")
o(f"v_add_u32 v{vT[1]}, 528, v{vT[1]}"); o(f"v_add_u32 v{vT[3]}, 8, v{vT[3]}")
o(f"s_add_u32 s{sT0}, s{sT0}, 0x1000"); o(f"s_add_u32 s{sT1}, s{sT1}, 0x80")
o(f"s_sub_u32 s{sT2}, s{sT2}, 1"); o(f"s_cmp_lg_u32 s{sT2}, 0"); o("s_cbranch_scc1 L_Bc")
lab("L_Bdone")
o(f"v_lshlrev_b32 v{vT[8]}, 4, v{vG}")
for i in range(32): o(f"v_mov_b32 v{ACC+i}, v{SV+i}")
o(f"v_mov_b32 v{vM}, v{SV-2}"); o(f"v_mov_b32 v{vL}, v{SV-1}")
loadQ(vT[8])
stamp()
o("s_branch L_A2")
lab("L_last")
def last_nextK():
    o(f"s_lshl_b32 s{sT0}, s{sH}, 7"); o(f"s_and_b32 s{sT1}, s{sW}, 3"); o(f"s_lshl_b32 s{sT1}, s{sT1}, 5"); o(f"s_add_u32 s{sT0}, s{sT0}, s{sT1}")
    o(f"s_lshl_b32 s{sT0}, s{sT0}, 11"); o(f"s_lshl_b32 s{sT1}, s{sB}, 8"); o(f"s_add_u32 s{sT0}, s{sT0}, s{sT1}")
    o(f"v_lshlrev_b32 v{vT[9]}, 14, v{vG}"); o(f"v_lshl_add_u32 v{vT[9]}, v{vC}, 4, v{vT[9]}")
    o(f"s_lshl_b32 s{sT2}, s91, 3"); o(f"s_add_u32 s{sT2}, s{sT2}, s{sW}"); o(f"s_lshl_b32 s{sT3}, s{sT2}, 4"); o(f"s_add_u32 s{sT3}, s{sT3}, {hex(BPML)}")
    o(f"s_lshl_b32 s{sT2}, s{sT2}, 9"); o(f"s_add_u32 s{sT2}, s{sT2}, {hex(BPO)}")
    o(f"v_lshlrev_b32 v{XT+44}, 3, v{vLANE}"); o(f"v_mov_b32 v{XT+45}, 0")
    o(f"buffer_load_dwordx2 {vr(XT+40,2)}, v{XT+44}, {srd(SWS)}, s{sT2} offen sc1")
    o(f"buffer_load_dwordx2 {vr(XT+42,2)}, v{XT+45}, {srd(SWS)}, s{sT3} offen sc1")
    for i in range(8):
        o(f"buffer_load_dwordx4 {vr(KB+i*4,4)}, v{vT[9]}, {srd(SWO)}, s{sT0} offen offset:{(i&1)*2048} {NT}")
        if i & 1 and i < 7: o(f"s_add_u32 s{sT0}, s{sT0}, 0x1000")
tile(last_nextK, lambda: None, wK=8, wV=8, prio=False)
stamp()
if TS:
    o(f"s_lshl_b32 s{sT0}, s91, 3"); o(f"s_add_u32 s{sT0}, s{sT0}, s{sW}"); o(f"s_lshl_b32 s{sT0}, s{sT0}, 2"); o(f"s_add_u32 s{sT0}, s{sT0}, {hex(TSO+0x4000)}")
    o(f"v_mov_b32 v{vT[0]}, s2"); o(f"v_mov_b32 v{vT[1]}, 0"); o(f"buffer_store_dword v{vT[0]}, v{vT[1]}, {srd(SWS)}, s{sT0} offen")
c("---- tail: combine A (wave 0) and B splits (wave 1)")
lab("L_pollB")
o(f"v_cmp_eq_u32 vcc, -1, v{XT+40}"); o(f"v_cmp_eq_u32 s[2:3], -1, v{XT+41}"); o("s_or_b64 vcc, vcc, s[2:3]")
o(f"v_cmp_eq_u32 s[2:3], -1, v{XT+42}"); o("s_or_b64 vcc, vcc, s[2:3]"); o(f"v_cmp_eq_u32 s[2:3], -1, v{XT+43}"); o("s_or_b64 vcc, vcc, s[2:3]")
o("s_cbranch_scc0 L_pollB_done")
o(f"s_sub_u32 s{sSPIN}, s{sSPIN}, 1"); o("s_cbranch_scc1 L_pollB_done"); o("s_sleep 1")
o(f"buffer_load_dwordx2 {vr(XT+40,2)}, v{XT+44}, {srd(SWS)}, s{sT2} offen sc1")
o(f"buffer_load_dwordx2 {vr(XT+42,2)}, v{XT+45}, {srd(SWS)}, s{sT3} offen sc1")
o("s_waitcnt vmcnt(0)"); o("s_branch L_pollB")
lab("L_pollB_done")
xmax(vL, vT[0], "v_add_f32")
o(f"s_lshl_b32 s{sT0}, s{sW}, 9"); o(f"v_lshl_add_u32 v{vT[1]}, v{vG}, 4, s{sT0}"); o(f"v_add_u32 v{vT[2]}, s{sT0}, v{XT+44}")
o(f"s_lshl_b32 s{sT0}, s{sW}, 3"); o(f"v_mov_b32 v{vT[3]}, s{sT0}")
o(f"ds_write_b64 v{vT[2]}, {vr(XT+40,2)} offset:{ACOMB+B2D}"); o(f"ds_write_b64 v{vT[3]}, {vr(XT+42,2)} offset:{AML+B2D}")
o(f"ds_write_b64 v{vT[3]}, {vr(vM,2)} offset:{AML}")
o("s_mov_b32 exec_lo, 0x00010001"); o("s_mov_b32 exec_hi, 0x00010001"); o("s_nop 1")
for e in range(8): o(f"ds_write_b128 v{vT[1]}, {vr(ACC+e*4,4)} offset:{ACOMB+e*64}")
o("s_mov_b64 exec, -1")
o(f"v_and_b32 v{vT[4]}, 7, v{vC}"); o(f"s_lshr_b32 s{sT1}, s{sW}, 2"); o(f"s_lshl_b32 s{sT0}, s{sT1}, 2"); o(f"v_lshl_add_u32 v{vT[5]}, v{vT[4]}, 3, s{sT0}")
o("s_waitcnt lgkmcnt(0)")
DRY = opts["DRY"]
if DRY:
    c("wave 1 walks the tail code once with no live lanes to pull it into the instruction cache")
    o(f"s_cmp_lg_u32 s{sW}, 1"); o("s_cbranch_scc1 L_real"); o("s_mov_b64 s[58:59], 0"); o("s_mov_b64 exec, 0"); o("s_branch L_tail")
    lab("L_real"); o("s_mov_b64 s[58:59], -1"); o("s_mov_b64 exec, -1")
o("s_barrier")
lab("L_tail")
o(f"ds_read_b32 v{vAL1}, v{vT[5]} offset:{GATE}")
o(f"s_cmp_gt_u32 s{sW}, 1"); o("s_cbranch_scc1 L_nocomb")
o(f"s_mul_i32 s{sT0}, s{sW}, {B2D}"); o(f"s_add_u32 s{sT2}, s{sT0}, {AML}"); o(f"s_add_u32 s{sT0}, s{sT0}, {ACOMB}")
o(f"v_and_b32 v{vT[1]}, 3, v{vLANE}"); o(f"v_lshlrev_b32 v{vT[1]}, 7, v{vT[1]}"); o(f"v_lshrrev_b32 v{vT[2]}, 2, v{vLANE}"); o(f"v_lshl_add_u32 v{vT[1]}, v{vT[2]}, 2, v{vT[1]}")
o(f"v_add_u32 v{vT[1]}, s{sT0}, v{vT[1]}"); o(f"v_mov_b32 v{vT[3]}, s{sT2}")
combine(vT[1], 512, vT[3], 8, False)
o(f"v_rcp_f32 v{vL}, v{vL}"); o("s_nop 0"); o(f"v_mul_f32 v{XT}, v{XT}, v{vL}"); o(f"v_mul_f32 v{XT+1}, v{XT+1}, v{vL}")
o(f"v_cvt_pk_bf16_f32 v{XT}, v{XT}, v{XT+1}")
o(f"s_lshl_b32 s{sT0}, s{sH}, 1"); o(f"s_add_u32 s{sT0}, s{sT0}, s{sW}"); o(f"s_lshl_b32 s{sT0}, s{sT0}, 3"); o(f"s_add_u32 s{sT0}, s{sT0}, s{sB}"); o(f"s_lshl_b32 s{sT0}, s{sT0}, 8"); o(f"s_add_u32 s{sT0}, s{sT0}, {hex(OI)}")
o(f"v_lshlrev_b32 v{vT[2]}, 2, v{vLANE}")
o(f"buffer_store_dword v{XT}, v{vT[2]}, {srd(SWS)}, s{sT0} offen sc1")
lab("L_nocomb")
stamp()
c("poll o operand: OI[(h*2+mat)*8 + (c&7)]*256 + (w&3)*64 + g*16")
o(f"s_lshr_b32 s{sT1}, s{sW}, 2"); o(f"s_lshl_b32 s{sT0}, s{sH}, 1"); o(f"s_add_u32 s{sT0}, s{sT0}, s{sT1}"); o(f"s_lshl_b32 s{sT0}, s{sT0}, 11")
o(f"s_and_b32 s{sT1}, s{sW}, 3"); o(f"s_lshl_b32 s{sT1}, s{sT1}, 6"); o(f"s_add_u32 s{sT0}, s{sT0}, s{sT1}"); o(f"s_add_u32 s{sT0}, s{sT0}, {hex(OI)}")
o(f"v_lshlrev_b32 v{vT[4]}, 8, v{vT[4]}"); o(f"v_lshl_add_u32 v{vT[4]}, v{vG}, 4, v{vT[4]}")
lab("L_pollO")
o(f"buffer_load_dwordx4 {vr(P0,4)}, v{vT[4]}, {srd(SWS)}, s{sT0} offen sc1"); o("s_waitcnt vmcnt(0)")
o(f"v_max3_u32 v{vT[0]}, v{P0}, v{P0+1}, v{P0+2}"); o(f"v_max_u32 v{vT[0]}, v{vT[0]}, v{P0+3}"); o(f"v_cmp_eq_u32 vcc, -1, v{vT[0]}")
spin_tail("L_pollO", "L_pollO_done")
stamp()
o("s_waitcnt lgkmcnt(0)"); o(f"v_mov_b32 v{vAL}, v{vAL1}")
pv(KB, P0, first=True)
o("s_nop 7")
for i in range(16): o(f"v_pk_mul_f32 {vr(ACC+2*i,2)}, {vr(ACC+2*i,2)}, {vr(vAL,2)} op_sel_hi:[1,0]")
if DRY: o("s_and_b32 exec_lo, s58, 0x00ff00ff"); o("s_and_b32 exec_hi, s58, 0x00ff00ff"); o("s_nop 1")
else: o("s_mov_b32 exec_lo, 0x00ff00ff"); o("s_mov_b32 exec_hi, 0x00ff00ff"); o("s_nop 1")
for e in range(8): o(f"ds_write_b128 v{vT[6]}, {vr(ACC+e*4,4)} offset:{ORED+e*64}")
o("s_mov_b64 exec, s[58:59]" if DRY else "s_mov_b64 exec, -1")
o(f"s_mul_i32 s{sT0}, s{sW}, 528"); o(f"s_add_u32 s{sT0}, s{sT0}, {ORED}")
o(f"v_and_b32 v{vT[1]}, 3, v{vLANE}"); o(f"v_lshlrev_b32 v{vT[1]}, 7, v{vT[1]}"); o(f"v_lshrrev_b32 v{vT[2]}, 2, v{vLANE}"); o(f"v_lshl_add_u32 v{vT[1]}, v{vT[2]}, 2, v{vT[1]}")
o(f"v_add_u32 v{vT[1]}, s{sT0}, v{vT[1]}")
for w in range(1, 8): o(f"v_add_u32 v{XT+16+w}, {w*4224}, v{vT[1]}")
o("s_waitcnt lgkmcnt(0)")
if DRY: o("s_cmp_eq_u32 s58, 0"); o("s_cbranch_scc1 L_nb2")
o("s_barrier")
lab("L_nb2")
for w in range(8): o(f"ds_read2_b32 {vr(XT+2*w,2)}, v{vT[1] if w==0 else XT+16+w} offset0:0 offset1:16")
o(f"s_lshl_b32 s{sT0}, s91, 3"); o(f"s_add_u32 s{sT0}, s{sT0}, s{sW}"); o(f"s_lshl_b32 s{sT0}, s{sT0}, 9"); o(f"s_add_u32 s{sT0}, s{sT0}, {hex(PI)}")
o("s_waitcnt lgkmcnt(0)")
for st in (8, 4, 2):
    for k in range(st): o(f"v_add_f32 v{XT+k}, v{XT+k}, v{XT+st+k}")
o(f"buffer_store_dwordx2 {vr(XT,2)}, v{XT+44}, {srd(SWS)}, s{sT0} offen sc1")
if DRY: o(f"s_and_b32 s{sT0}, s{sW}, s58"); o("s_cbranch_scc1 L_end")
else: o(f"s_cmp_lg_u32 s{sW}, 0"); o("s_cbranch_scc1 L_end")
stamp()
c("final reduce: PI[(b*32+h')*8 + (h>>2)]*512 + (h&3)*128 + (l&7)*16, h' = (l>>3)+8k")
o(f"s_lshl_b32 s{sT0}, s{sB}, 17"); o(f"s_lshl_b32 s{sT1}, s{sH}, 7"); o(f"s_add_u32 s{sT0}, s{sT0}, s{sT1}"); o(f"s_add_u32 s{sT0}, s{sT0}, {hex(PI)}")
o(f"s_add_u32 s{sT1}, s{sT0}, 0x8000"); o(f"s_add_u32 s{sT2}, s{sT0}, 0x10000"); o(f"s_add_u32 s{sT3}, s{sT0}, 0x18000")
o(f"v_lshrrev_b32 v{vT[1]}, 3, v{vLANE}"); o(f"v_lshlrev_b32 v{vT[1]}, 12, v{vT[1]}"); o(f"v_and_b32 v{vT[2]}, 7, v{vLANE}"); o(f"v_lshl_add_u32 v{vT[1]}, v{vT[2]}, 4, v{vT[1]}")
lab("L_pollP")
for k, sr in enumerate((sT0, sT1, sT2, sT3)): o(f"buffer_load_dwordx4 {vr(XT+4*k,4)}, v{vT[1]}, {srd(SWS)}, s{sr} offen sc1")
o("s_waitcnt vmcnt(0)")
o(f"v_max3_u32 v{vT[0]}, v{XT}, v{XT+1}, v{XT+2}")
for k in range(3, 15, 2): o(f"v_max3_u32 v{vT[0]}, v{vT[0]}, v{XT+k}, v{XT+k+1}")
o(f"v_max_u32 v{vT[0]}, v{vT[0]}, v{XT+15}"); o(f"v_cmp_eq_u32 vcc, -1, v{vT[0]}")
spin_tail("L_pollP", "L_pollP_done")
for st in (8, 4):
    for k in range(st): o(f"v_add_f32 v{XT+k}, v{XT+k}, v{XT+st+k}")
o("s_nop 1")
for k in range(4): o(f"v_add_f32_dpp v{XT+k}, v{XT+k}, v{XT+k} row_ror:8 row_mask:0xf bank_mask:0xf")
for sw in ("v_permlane32_swap_b32", "v_permlane16_swap_b32"):
    for k in range(4): o(f"v_mov_b32 v{XT+4+k}, v{XT+k}")
    o("s_nop 0")
    for k in range(4): o(f"{sw} v{XT+4+k}, v{XT+k}")
    o("s_nop 0")
    for k in range(4): o(f"v_add_f32 v{XT+k}, v{XT+k}, v{XT+4+k}")
o(f"v_cvt_pk_bf16_f32 v{XT}, v{XT}, v{XT+1}"); o(f"v_cvt_pk_bf16_f32 v{XT+1}, v{XT+2}, v{XT+3}")
o(f"s_lshr_b32 s{sT0}, s{sH}, 2"); o(f"s_lshl_b32 s{sT0}, s{sT0}, 11"); o(f"s_lshl_b32 s{sT1}, s{sB}, 8"); o(f"s_add_u32 s{sT0}, s{sT0}, s{sT1}")
o(f"s_and_b32 s{sT1}, s{sH}, 3"); o(f"s_lshl_b32 s{sT1}, s{sT1}, 6"); o(f"s_add_u32 s{sT0}, s{sT0}, s{sT1}")
o(f"v_mov_b32 v{vT[3]}, {hex(OOB)}"); o(f"v_cmp_gt_u32 vcc, 8, v{vLANE}"); o("s_nop 1"); o(f"v_cndmask_b32 v{vT[3]}, v{vT[3]}, v{XT+44}, vcc")
o(f"buffer_store_dwordx2 {vr(XT,2)}, v{vT[3]}, {srd(SOUT)}, s{sT0} offen")
if DRY: o("s_cmp_eq_u32 s58, 0"); o("s_cbranch_scc1 L_real")
o("s_cmp_lg_u32 s91, 0"); o("s_cbranch_scc1 L_nobump")
o(f"s_add_u32 s{sEP}, s{sEP}, 0x01000193"); o(f"v_mov_b32 v{vT[0]}, s{sEP}"); o(f"v_mov_b32 v{vT[1]}, {hex(EPO)}")
o(f"buffer_store_dword v{vT[0]}, v{vT[1]}, {srd(SWS)}, 0 offen")
lab("L_nobump")
if TS:
    stamp()
    o(f"s_lshl_b32 s{sT0}, s91, 6"); o(f"s_add_u32 s{sT0}, s{sT0}, {hex(TSO)}"); o(f"v_mov_b32 v{vT[1]}, 0")
    o("s_getreg_b32 s2, hwreg(HW_REG_XCC_ID)"); o(f"v_mov_b32 v{vT[0]}, s2")
    o(f"buffer_store_dword v{vT[0]}, v{vT[1]}, {srd(SWS)}, s{sT0} offen offset:60")
    for i in range(nstamp[0]):
        o(f"v_mov_b32 v{vT[0]}, s{TSR[i]}"); o(f"buffer_store_dword v{vT[0]}, v{vT[1]}, {srd(SWS)}, s{sT0} offen offset:{i*4}")
lab("L_end")
hdr = open("cdna_kernels/" + NAME + ".s.ref").read().split("\n")
out = []
for ln in hdr:
    if ln.startswith("; @launch"): out.append(f"; @launch grid=(256,1,1) block=(512,1,1) lds={LDS_BYTES}")
    elif ln.startswith(NAME + "_kernel:"):
        out.append(ln); out += L; break
    else: out.append(ln)
out.append("s_endpgm")
tail = hdr[hdr.index('.section .rodata,"a"'):]
out += [t for t in tail]
open(sys.argv[1], "w").write("\n".join(out) + "\n")
print("lines", len(L), "lds", LDS_BYTES, "stamps", nstamp[0])
```

```python
import sys
NAME = "gated_mix__mha_block_cached__gqa_block_cached__decode"
opts = dict(TS=0, SPIN=400000, NT="nt", WQNT="", NSTAT=5, DYN=0, BAR=0, REMAP=0, PRIO=0, D2=1, F=-1, KL=1, CW=1, KV=0, DRY=0, RM=0, RS=0, RK=127, PERM=0)
for a in sys.argv[2:]:
    k, v = a.split("="); opts[k] = int(v) if v.lstrip("-").isdigit() else v
TS = opts["TS"]; NT = opts["NT"]
L = []
def o(s): L.append("    " + s)
def lab(s): L.append(s + ":")
def c(s): L.append("    ; " + s)
SAK, SAV, SBK, SBV, SWQ, SWO, SX, SWS, SDBG, SOUT, SGW = 4, 8, 12, 16, 20, 24, 28, 32, 64, 68, 72
sH, sB, sW = 76, 77, 78
sT0, sT1, sT2, sT3 = 79, 80, 81, 82
sSEL0, sSEL1, sSCALE, sLOG2E, sOFF, sOFF2, sCNT, sSPIN = 83, 84, 85, 86, 87, 88, 89, 90
TSR = list(range(92,102))+[36,38,39,40]
def srd(r): return f"s[{r}:{r+3}]"
vLANE, vG, vC, vOK, vOV = 1, 2, 3, 4, 5
vT = list(range(6, 16))
vM, vL, vAL, vAL1 = 16, 17, 18, 19
S0, P0, Q0, ACC, VT, KB, VB, XT = 20, 28, 32, 48, 80, 96, 128, 160
def vr(b, n): return f"v[{b}:{b+n-1}]"
BML = 0; ACOMB = 512; AML = ACOMB + 4096
B2D = 4096 + 64; QS = ACOMB + 2 * B2D; GATE = QS + 2304
CNT = GATE + 64; QA = CNT + 64
QRED = BCOMB = ORED = QA + 4096; LDS_BYTES = QRED + 33792
assert QRED % 16 == 0
QP, BPO, BPML, OI, PI, TSO = 0, 0x100000, 0x200000, 0x210000, 0x300000, 0x400000
WS_BYTES = 0x410000
EPO = 0x280000
sEP = 52
OOB = 0x7ffffff0
nstamp = [0]
sTC = 51
uid = [0]
def U(p): uid[0] += 1; return f"L_{p}{uid[0]}"
def stamp():
    if not TS: return
    i = nstamp[0]; nstamp[0] += 1
    assert i < 14
    o("s_memrealtime s[2:3]"); o("s_waitcnt lgkmcnt(0)"); o(f"s_mov_b32 s{TSR[i]}, s2")
def mksrd(r, ptr, nbytes, offreg=None):
    if offreg is None:
        o(f"s_mov_b32 s{r}, s{ptr}"); o(f"s_and_b32 s{r+1}, s{ptr+1}, 0xffff")
    else:
        o(f"s_add_u32 s{r}, s{ptr}, s{offreg}"); o(f"s_addc_u32 s{r+1}, s{ptr+1}, 0"); o(f"s_and_b32 s{r+1}, s{r+1}, 0xffff")
    o(f"s_mov_b32 s{r+2}, {hex(nbytes)}"); o(f"s_mov_b32 s{r+3}, 0x00020000")
def offr(sr, i):
    if not opts["RM"] and not opts["PERM"]: return (sOFF, sOFF2)[i]
    return ((42, sOFF2) if sr in (SAK, SAV) else (43, 57))[i]
def loadK(sr, dst=KB):
    if opts["KV"] and sr == SAK: return loadV(sr, dst)
    for t in range(2):
        for j in range(4):
            o(f"buffer_load_dwordx4 {vr(dst+t*16+j*4,4)}, v{vOK}, {srd(sr)}, s{offr(sr, t)} offen offset:{j*64} {NT}")
def loadV(sr, dst=VB):
    for i in range(8):
        o(f"buffer_load_dwordx4 {vr(dst+i*4,4)}, v{vOV}, {srd(sr)}, s{offr(sr, i>>2)} offen offset:{(i&3)*1024} {NT}")
def pv(src, pb, first=False):
    def perms(e):
        w_, hb = e >> 1, e & 1
        for u in range(4):
            o(f"v_perm_b32 v{VT+(e&3)*4+u}, v{src+(2*u+1)*4+w_}, v{src+(2*u)*4+w_}, s{sSEL1 if hb else sSEL0}")
    perms(0)
    for e in range(8):
        if e + 1 < 8: perms(e + 1)
        else: o("s_nop 1")
        cc = "0" if first else vr(ACC+e*4, 4)
        o(f"v_mfma_f32_16x16x32_bf16 {vr(ACC+e*4,4)}, {vr(VT+(e&3)*4,4)}, {vr(pb,4)}, {cc}")
def xmax(v, t, op="v_max_f32"):
    for sw in ("v_permlane32_swap_b32", "v_permlane16_swap_b32"):
        o(f"v_mov_b32 v{t}, v{v}"); o("s_nop 1"); o(f"{sw} v{t}, v{v}"); o("s_nop 0"); o(f"{op} v{v}, v{t}, v{v}")
def rnd2(a, b, t):
    o(f"v_cvt_pk_bf16_f32 v{t}, v{a}, v{b}"); o(f"v_lshlrev_b32 v{a}, 16, v{t}"); o(f"v_and_b32 v{b}, 0xffff0000, v{t}")
def fair():
    l1, l2 = U("pl"), U("pd")
    o(f"s_add_u32 s{sTC}, s{sTC}, 1"); o(f"s_lshl_b32 s{sT0}, s{sW}, 2"); o(f"s_xor_b32 s{sT1}, s{sT0}, 16")
    o(f"v_mov_b32 v{vT[0]}, s{sT0}"); o(f"v_mov_b32 v{vT[1]}, s{sT1}"); o(f"v_mov_b32 v{vT[2]}, s{sTC}")
    o(f"ds_write_b32 v{vT[0]}, v{vT[2]} offset:{CNT+16}"); o(f"ds_read_b32 v{vT[1]}, v{vT[1]} offset:{CNT+16}")
    o("s_waitcnt lgkmcnt(0)"); o(f"v_readfirstlane_b32 s{sT0}, v{vT[1]}")
    o(f"s_cmp_gt_u32 s{sTC}, s{sT0}"); o(f"s_cbranch_scc1 {l1}"); o("s_setprio 1"); o(f"s_branch {l2}"); lab(l1); o("s_setprio 0"); lab(l2)
def tile(nextK, nextV, wK=8, wV=8, prio=True, ks=KB, vs=VB):
    if opts["BAR"]: o("s_barrier")
    o(f"s_waitcnt vmcnt({wK})")
    for j in range(4):
        for t in range(2):
            cc = "0" if j == 0 else vr(S0+t*4, 4)
            o(f"v_mfma_f32_16x16x32_bf16 {vr(S0+t*4,4)}, {vr(ks+t*16+j*4,4)}, {vr(Q0+j*4,4)}, {cc}")
    n0 = len(L); nextK(); n = len(L) - n0
    if n < 8: o(f"s_nop {8-n-1}")
    for i in range(4): rnd2(S0+2*i, S0+2*i+1, vT[i])
    for i in range(8): o(f"v_mul_f32 v{S0+i}, s{sSCALE}, v{S0+i}")
    for i in range(4): rnd2(S0+2*i, S0+2*i+1, vT[i])
    mx = vT[4]
    o(f"v_max3_f32 v{mx}, v{S0}, v{S0+1}, v{S0+2}"); o(f"v_max3_f32 v{vT[5]}, v{S0+3}, v{S0+4}, v{S0+5}")
    o(f"v_max3_f32 v{mx}, v{mx}, v{S0+6}, v{S0+7}"); o(f"v_max3_f32 v{mx}, v{mx}, v{vT[5]}, v{vM}")
    xmax(mx, vT[5])
    o(f"v_sub_f32 v{vAL}, v{vM}, v{mx}"); o(f"v_mov_b32 v{vM}, v{mx}")
    o(f"v_mul_f32 v{vAL}, s{sLOG2E}, v{vAL}")
    for i in range(8): o(f"v_sub_f32 v{S0+i}, v{S0+i}, v{vM}")
    o(f"v_exp_f32 v{vAL}, v{vAL}")
    for i in range(8): o(f"v_mul_f32 v{S0+i}, s{sLOG2E}, v{S0+i}")
    for i in range(8): o(f"v_exp_f32 v{S0+i}, v{S0+i}")
    for i in range(16): o(f"v_pk_mul_f32 {vr(ACC+2*i,2)}, {vr(ACC+2*i,2)}, {vr(vAL,2)} op_sel_hi:[1,0]")
    for i in range(4): o(f"v_cvt_pk_bf16_f32 v{P0+i}, v{S0+2*i}, v{S0+2*i+1}")
    o(f"v_add_f32 v{vT[0]}, v{S0}, v{S0+1}"); o(f"v_add_f32 v{vT[1]}, v{S0+2}, v{S0+3}")
    o(f"v_add_f32 v{vT[2]}, v{S0+4}, v{S0+5}"); o(f"v_add_f32 v{vT[3]}, v{S0+6}, v{S0+7}")
    o(f"v_add_f32 v{vT[0]}, v{vT[0]}, v{vT[1]}"); o(f"v_add_f32 v{vT[2]}, v{vT[2]}, v{vT[3]}")
    o(f"v_add_f32 v{vT[0]}, v{vT[0]}, v{vT[2]}"); o(f"v_fma_f32 v{vL}, v{vL}, v{vAL}, v{vT[0]}")
    o(f"s_waitcnt vmcnt({wV})")
    pv(vs, P0)
    nextV()
    if opts["PRIO"] and prio: fair()
def setoff(expr_reg_or_none, add):
    if add: o(f"s_add_u32 s{sOFF}, s{sOFF}, {hex(add)}")
    if opts["PERM"]:
        k = opts["PERM"]
        o(f"s_lshl_b32 s42, s{sOFF}, {k}"); o("s_and_b32 s42, s42, 0xfe000"); o(f"s_lshr_b32 s43, s{sOFF}, {7-k}"); o("s_and_b32 s43, s43, 0xfe000")
        o("s_or_b32 s42, s42, s43"); o(f"s_add_u32 s{sOFF2}, s42, 0x1000")
        o(f"s_and_b32 s43, s{sOFF}, 0x1ffff"); o(f"s_add_u32 s57, s43, 0x1000")
    elif opts["RM"]:
        o(f"s_xor_b32 s42, s{sOFF}, s37"); o(f"s_add_u32 s{sOFF2}, s42, 0x1000")
        o(f"s_and_b32 s43, s42, 0x1ffff"); o(f"s_add_u32 s57, s43, 0x1000")
    else: o(f"s_add_u32 s{sOFF2}, s{sOFF}, 0x1000")
def initsm():
    o(f"v_mov_b32 v{vM}, 0xff7fffff"); o(f"v_mov_b32 v{vL}, 0")
    for i in range(32): o(f"v_mov_b32 v{ACC+i}, 0")
def loadQ(base_expr_v):
    for j in range(4): o(f"ds_read_b128 {vr(Q0+j*4,4)}, v{base_expr_v} offset:{QS+j*64}")
    o("s_waitcnt lgkmcnt(0)")
def combine(vaddr, vstride, vml, mlstride, pairmode):
    ml = XT + 2; val = XT + 18
    for w in range(8): o(f"ds_read_b64 {vr(ml+2*w,2)}, v{vml} offset:{w*mlstride}")
    for w in range(8):
        if pairmode: o(f"ds_read_b64 {vr(val+2*w,2)}, v{vaddr} offset:{w*vstride}")
        else:
            o(f"v_add_u32 v{vT[0]}, {w*vstride}, v{vaddr}")
            o(f"ds_read2_b32 {vr(val+2*w,2)}, v{vT[0]} offset0:0 offset1:16")
    o("s_waitcnt lgkmcnt(8)")
    o(f"v_max3_f32 v{vM}, v{ml}, v{ml+2}, v{ml+4}"); o(f"v_max3_f32 v{vM}, v{vM}, v{ml+6}, v{ml+8}")
    o(f"v_max3_f32 v{vM}, v{vM}, v{ml+10}, v{ml+12}"); o(f"v_max_f32 v{vM}, v{vM}, v{ml+14}")
    for w in range(8): o(f"v_sub_f32 v{ml+2*w}, v{ml+2*w}, v{vM}")
    for w in range(8): o(f"v_mul_f32 v{ml+2*w}, s{sLOG2E}, v{ml+2*w}")
    for w in range(8): o(f"v_exp_f32 v{ml+2*w}, v{ml+2*w}")
    o("s_waitcnt lgkmcnt(0)")
    o(f"v_mul_f32 v{vL}, v{ml}, v{ml+1}"); o(f"v_mul_f32 v{XT}, v{ml}, v{val}"); o(f"v_mul_f32 v{XT+1}, v{ml}, v{val+1}")
    for w in range(1, 8):
        o(f"v_fmac_f32 v{vL}, v{ml+2*w}, v{ml+2*w+1}"); o(f"v_fmac_f32 v{XT}, v{ml+2*w}, v{val+2*w}"); o(f"v_fmac_f32 v{XT+1}, v{ml+2*w}, v{val+2*w+1}")
def spin_tail(label, done):
    o(f"s_cbranch_vccz {done}")
    o(f"s_sub_u32 s{sSPIN}, s{sSPIN}, 1"); o(f"s_cbranch_scc1 {done}")
    o("s_sleep 1"); o(f"s_branch {label}")
    lab(done)

SWQB = 44
sKN, sBD = 48, 49
NSTAT = opts["NSTAT"]; WQNT = opts["WQNT"]
def lds_ctr(op, off, rd):
    o(f"v_mov_b32 v{vT[0]}, 0"); o(f"v_mov_b32 v{vT[1]}, 1"); o("s_mov_b64 exec, 1")
    if op == "add": o(f"ds_add_u32 v{vT[0]}, v{vT[1]} offset:{off}")
    elif op == "addr": o(f"ds_add_rtn_u32 v{vT[2]}, v{vT[0]}, v{vT[1]} offset:{off}")
    else: o(f"ds_read_b32 v{vT[2]}, v{vT[0]} offset:{off}")
    o("s_mov_b64 exec, -1")
    if rd is not None: o("s_waitcnt lgkmcnt(0)"); o(f"v_readfirstlane_b32 s{rd}, v{vT[2]}")
def decide_dyn(bdone_known):
    dn, fin, isb, nb = U("dn"), U("fin"), U("isb"), U("nb")
    if not bdone_known:
        o(f"s_cmp_lg_u32 s{sBD}, 0"); o(f"s_cbranch_scc1 {nb}")
        lds_ctr("rd", CNT+4, sT0); o(f"s_cmp_ge_u32 s{sT0}, 8"); o(f"s_cbranch_scc1 {isb}")
        lab(nb)
    if opts["DYN"]:
        lds_ctr("addr", CNT+12, sT0); o(f"s_add_u32 s{sT0}, s{sT0}, {NSTAT*8}")
    else:
        o(f"s_add_u32 s50, s50, {8 if opts['F'] < 0 else 4}"); o(f"s_mov_b32 s{sT0}, s50")
    o(f"s_cmp_ge_u32 s{sT0}, s56"); o(f"s_cbranch_scc1 {fin}")
    o(f"s_mov_b32 s{sKN}, 0"); o(f"s_lshl_b32 s{sOFF}, s{sT0}, 13"); o(f"s_branch {dn}")
    lab(fin)
    if not bdone_known:
        f2, sp = U("f2"), U("sp")
        o(f"s_cmp_lg_u32 s{sBD}, 0"); o(f"s_cbranch_scc1 {f2}")
        lab(sp)
        lds_ctr("rd", CNT+4, sT0); o(f"s_cmp_ge_u32 s{sT0}, 8"); o(f"s_cbranch_scc1 {isb}")
        o(f"s_sub_u32 s{sSPIN}, s{sSPIN}, 1"); o(f"s_cbranch_scc1 {isb}"); o("s_sleep 2"); o(f"s_branch {sp}")
        lab(isb)
        o(f"s_mov_b32 s{sKN}, 1"); o(f"s_lshl_b32 s{sOFF}, s{sW}, 13"); o(f"s_branch {dn}")
        lab(f2)
    o(f"s_mov_b32 s{sKN}, 2"); o(f"s_add_u32 s{sT0}, s{sW}, 120"); o(f"s_lshl_b32 s{sOFF}, s{sT0}, 13")
    lab(dn)
    setoff(None, 0)
def sel_load(fn, a, b_):
    l1, l2 = U("sb"), U("sd")
    o(f"s_cmp_eq_u32 s{sKN}, 1"); o(f"s_cbranch_scc1 {l1}"); fn(a); o(f"s_branch {l2}"); lab(l1); fn(b_); lab(l2)

o("s_cmp_ge_u32 s2, 256"); o("s_cbranch_scc1 L_end")
o("s_load_dwordx16 s[36:51], s[0:1], 0"); o("s_load_dwordx8 s[52:59], s[0:1], 64"); o("s_load_dwordx4 s[60:63], s[0:1], 96")
if opts["REMAP"] >= 2:
    k = opts["REMAP"]
    o(f"s_and_b32 s{sH}, s2, 7"); o(f"s_lshl_b32 s{sH}, s{sH}, {k}"); o(f"s_bfe_u32 s{sB}, s2, {hex((k<<16)|3)}"); o(f"s_or_b32 s{sH}, s{sH}, s{sB}")
    o(f"s_andn2_b32 s2, s2, {(1<<(k+3))-1}"); o(f"s_or_b32 s2, s2, s{sH}")
    o(f"s_and_b32 s{sH}, s2, 31"); o(f"s_lshr_b32 s{sB}, s2, 5")
elif opts["REMAP"]:
    o(f"s_and_b32 s{sH}, s2, 7"); o(f"s_lshl_b32 s{sH}, s{sH}, 2"); o(f"s_bfe_u32 s{sB}, s2, 0x20003"); o(f"s_or_b32 s{sH}, s{sH}, s{sB}")
    o(f"s_lshr_b32 s{sB}, s2, 5"); o(f"s_andn2_b32 s2, s2, 31"); o(f"s_or_b32 s2, s2, s{sH}")
else:
    o(f"s_and_b32 s{sH}, s2, 31"); o(f"s_lshr_b32 s{sB}, s2, 5")
o(f"v_lshrrev_b32 v{vT[0]}, 6, v0"); o(f"v_and_b32 v{vLANE}, 63, v0")
o(f"v_readfirstlane_b32 s{sW}, v{vT[0]}")
o(f"v_lshrrev_b32 v{vG}, 4, v{vLANE}"); o(f"v_and_b32 v{vC}, 15, v{vLANE}")
o(f"s_mov_b32 s91, s2")
c("x operand offsets / wq offsets")
o(f"v_and_b32 v{vT[3]}, 7, v{vC}"); o(f"v_lshlrev_b32 v{vT[3]}, 11, v{vT[3]}"); o(f"v_lshl_add_u32 v{vT[3]}, v{vG}, 4, v{vT[3]}")
o(f"v_lshlrev_b32 v{vT[5]}, 16, v{vG}"); o(f"v_lshl_add_u32 v{vT[5]}, v{vC}, 4, v{vT[5]}")
o(f"v_lshlrev_b32 v{vOV}, 4, v{vLANE}")
o(f"s_and_b32 s{sT0}, s{sB}, 3"); o(f"s_lshl_b32 s{sT0}, s{sT0}, 8"); o(f"s_lshl_b32 s{sT1}, s{sW}, 5"); o(f"s_add_u32 s{sT0}, s{sT0}, s{sT1}")
o(f"s_lshl_b32 s{sT1}, s{sT0}, 1"); o(f"s_lshl_b32 s{sT0}, s{sT0}, 13"); o(f"s_lshl_b32 s{sOFF}, s{sH}, 8"); o(f"s_add_u32 s{sT0}, s{sT0}, s{sOFF}")
o(f"s_cmp_lt_u32 s{sB}, 4")
o("s_waitcnt lgkmcnt(0)")
o(f"s_cselect_b32 s{sT2}, s42, s52"); o(f"s_cselect_b32 s{sT3}, s43, s53")
stamp()
mksrd(SWQ, sT2, 0x800000); mksrd(SX, 36, 16384)
for i in range(8):
    o(f"buffer_load_dwordx4 {vr(XT+i*4,4)}, v{vT[5]}, {srd(SWQ)}, s{sT0} offen {NT}")
    if i < 7: o(f"s_add_u32 s{sT0}, s{sT0}, 0x2000")
o(f"buffer_load_dwordx4 {vr(P0,4)}, v{vT[3]}, {srd(SX)}, s{sT1} offen")
o(f"s_mov_b32 s53, {hex(EPO)}"); o(f"s_load_dword s{sEP}, s[62:63], s53")
mksrd(SWS, 62, WS_BYTES)
c("---- sentinel clears of this WG's own outboxes; zero LDS counters")
CL = ACC
for i in range(4): o(f"v_mov_b32 v{CL+i}, -1")
for i in range(4): o(f"v_mov_b32 v{CL+4+i}, 0")
o(f"ds_write_b128 v{CL+4}, {vr(CL+4,4)} offset:{CNT}"); o(f"ds_write_b128 v{CL+4}, {vr(CL+4,4)} offset:{CNT+16}"); o(f"ds_write_b128 v{CL+4}, {vr(CL+4,4)} offset:{CNT+32}")
o(f"s_lshl_b32 s{sT0}, s91, 3"); o(f"s_add_u32 s{sT0}, s{sT0}, s{sW}"); o(f"s_lshl_b32 s{sT0}, s{sT0}, 9"); o(f"s_add_u32 s{sT0}, s{sT0}, {hex(PI)}")
o(f"s_and_b32 s{sT1}, s91, 0xf8"); o(f"s_add_u32 s{sT1}, s{sT1}, s{sW}"); o(f"s_lshl_b32 s{sT1}, s{sT1}, 3"); o(f"s_and_b32 s{sT2}, s91, 7"); o(f"s_add_u32 s{sT1}, s{sT1}, s{sT2}")
o(f"s_lshl_b32 s{sT1}, s{sT1}, 9"); o(f"s_add_u32 s{sT1}, s{sT1}, {hex(BPO-512)}")
o(f"v_mov_b32 v{vT[0]}, s{sT0}"); o(f"v_mov_b32 v{vT[1]}, s{sT1}"); o(f"v_cmp_gt_u32 vcc, 32, v{vLANE}"); o("s_nop 1")
o(f"v_cndmask_b32 v{vT[0]}, v{vT[1]}, v{vT[0]}, vcc"); o(f"v_add_u32 v{vT[0]}, v{vT[0]}, v{vOV}")
o(f"buffer_store_dwordx4 {vr(CL,4)}, v{vT[0]}, {srd(SWS)}, 0 offen sc1")
o(f"s_lshr_b32 s{sT0}, s{sW}, 2"); o(f"s_lshl_b32 s{sT2}, s{sH}, 1"); o(f"s_add_u32 s{sT0}, s{sT0}, s{sT2}"); o(f"s_lshl_b32 s{sT0}, s{sT0}, 3"); o(f"s_add_u32 s{sT0}, s{sT0}, s{sB}")
o(f"s_lshl_b32 s{sT0}, s{sT0}, 8"); o(f"s_and_b32 s{sT2}, s{sW}, 3"); o(f"s_lshl_b32 s{sT2}, s{sT2}, 6"); o(f"s_add_u32 s{sT0}, s{sT0}, s{sT2}"); o(f"s_add_u32 s{sT0}, s{sT0}, {hex(OI)}")
o(f"s_sub_u32 s{sT1}, s{sT1}, {hex(BPO-512)}"); o(f"s_lshr_b32 s{sT1}, s{sT1}, 5"); o(f"s_add_u32 s{sT1}, s{sT1}, {hex(BPML)}")
o(f"v_add_u32 v{vT[0]}, s{sT0}, v{vOV}"); o(f"v_mov_b32 v{vT[1]}, s{sT1}"); o(f"v_mov_b32 v{vT[2]}, {hex(OOB)}")
o(f"v_cmp_eq_u32 vcc, 4, v{vLANE}"); o("s_nop 1"); o(f"v_cndmask_b32 v{vT[1]}, v{vT[2]}, v{vT[1]}, vcc")
o(f"v_cmp_gt_u32 vcc, 4, v{vLANE}"); o("s_nop 1"); o(f"v_cndmask_b32 v{vT[0]}, v{vT[1]}, v{vT[0]}, vcc")
o(f"buffer_store_dwordx4 {vr(CL,4)}, v{vT[0]}, {srd(SWS)}, 0 offen sc1")

o(f"s_lshl_b32 s{sT0}, s91, 20"); o(f"s_lshl_b32 s{sT1}, s91, 17")
mksrd(SAK, 38, 0x100000, sT0)
o(f"v_and_b32 v{vT[0]}, 3, v{vC}"); o(f"v_lshrrev_b32 v{vT[1]}, 2, v{vC}"); o(f"v_lshl_add_u32 v{vT[0]}, v{vT[0]}, 2, v{vT[1]}")
o(f"v_lshlrev_b32 v{vT[0]}, 8, v{vT[0]}"); o(f"v_lshl_add_u32 v{vOK}, v{vG}, 4, v{vT[0]}")
mksrd(SGW, 56, 2048)
if opts["RM"]:
    o(f"s_mul_i32 s37, s91, {opts['RM']}"); o(f"s_lshr_b32 s37, s37, {opts['RS']}"); o(f"s_and_b32 s37, s37, {opts['RK']}"); o("s_lshl_b32 s37, s37, 13")
o(f"s_lshl_b32 s{sOFF}, s{sW}, 13"); setoff(None, 0)
if not opts["KL"]: loadK(SAK)
mksrd(SAV, 40, 0x100000, sT0); mksrd(SBK, 48, 0x20000, sT1); mksrd(SBV, 50, 0x20000, sT1)
o(f"s_cmp_lt_u32 s{sW}, 4"); o(f"s_cselect_b32 s{sT2}, s44, s54"); o(f"s_cselect_b32 s{sT3}, s45, s55")
mksrd(SWO, sT2, 0x800000)
mksrd(SDBG, 60, 256); mksrd(SOUT, 58, 16384)
o(f"s_mov_b32 s{sSEL0}, 0x05040100"); o(f"s_mov_b32 s{sSEL1}, 0x07060302")
o(f"s_mov_b32 s{sSCALE}, 0x3db504f3"); o(f"s_mov_b32 s{sLOG2E}, 0x3fb8aa3b"); o(f"s_mov_b32 s{sSPIN}, {opts['SPIN']}")
o(f"s_mov_b32 s{sKN}, 0"); o(f"s_mov_b32 s{sBD}, 0"); o(f"s_add_u32 s50, s{sW}, {NSTAT*8-8}"); o(f"s_mov_b32 s{sTC}, 0")
o("s_mov_b32 s56, 120")
if opts["F"] >= 0:
    FL = NSTAT*8 + 4*opts["F"]
    assert FL <= 120
    o(f"s_add_u32 s50, s{sW}, {FL-4}"); o(f"s_add_u32 s{sT3}, s{sW}, {NSTAT*8-8}")
    o(f"s_cmp_lt_u32 s{sW}, 4"); o(f"s_cselect_b32 s50, s50, s{sT3}"); o(f"s_cselect_b32 s56, s56, {FL}")
o(f"s_mov_b32 s44, 0x07060500"); o(f"s_mov_b32 s45, 0x07060501"); o(f"s_mov_b32 s46, 0x07060502"); o(f"s_mov_b32 s47, 0x07060503")
o(f"s_mov_b32 s54, 0x0c0c0400"); o(f"s_mov_b32 s55, 0x04000c0c")
c("persistent LDS bases")
o(f"s_mul_i32 s{sT0}, s{sW}, 4224"); o(f"v_mul_u32_u24 v{vT[6]}, 528, v{vC}"); o(f"v_add_u32 v{vT[6]}, s{sT0}, v{vT[6]}")
o(f"v_lshl_add_u32 v{vT[6]}, v{vG}, 4, v{vT[6]}")
c("reduce address: QRED + half*4*4224 + w*528 + (l&31)*16 ; publish offset")
o(f"v_lshrrev_b32 v{vT[0]}, 5, v{vLANE}"); o(f"v_mul_u32_u24 v{vT[1]}, {4*4224}, v{vT[0]}"); o(f"v_and_b32 v{vT[2]}, 31, v{vLANE}"); o(f"v_lshlrev_b32 v{vT[2]}, 4, v{vT[2]}")
o(f"s_mul_i32 s{sT0}, s{sW}, 528"); o(f"v_add3_u32 v{vT[1]}, v{vT[1]}, v{vT[2]}, s{sT0}")
o(f"v_lshl_add_u32 v{vT[7]}, v{vT[0]}, 13, v{vT[2]}")
o(f"v_mov_b32 v{vT[3]}, {hex(OOB)}"); o(f"v_cmp_gt_u32 vcc, 32, v{vLANE}"); o("s_nop 1"); o(f"v_cndmask_b32 v{vT[2]}, v{vT[3]}, v{vT[2]}, vcc")
o(f"s_lshr_b32 s{sT0}, s{sB}, 2"); o(f"s_lshl_b32 s{sT0}, s{sT0}, 5"); o(f"s_add_u32 s{sT0}, s{sT0}, s{sH}"); o(f"s_lshl_b32 s{sT0}, s{sT0}, 2")
o(f"s_and_b32 s{sT1}, s{sB}, 3"); o(f"s_add_u32 s{sT0}, s{sT0}, s{sT1}"); o(f"s_lshl_b32 s{sT0}, s{sT0}, 12"); o(f"s_lshl_b32 s{sT1}, s{sW}, 9"); o(f"s_add_u32 s{sT0}, s{sT0}, s{sT1}")
o(f"s_waitcnt vmcnt({2 if opts['KL'] else 10}) lgkmcnt(0)")
if opts["KL"] == 2: loadK(SAK)
o(f"s_xor_b32 s53, s{sEP}, 0x5bd1e995"); o(f"v_mov_b32 v{vAL1}, s53")
stamp()
pv(XT, P0, first=True)
o("s_mov_b32 exec_lo, 0x00ff00ff"); o("s_mov_b32 exec_hi, 0x00ff00ff"); o("s_nop 5")
for e in range(8): o(f"ds_write_b128 v{vT[6]}, {vr(ACC+e*4,4)} offset:{QRED+e*64}")
o("s_mov_b64 exec, -1")
if opts["KL"] == 1: loadK(SAK)
o("s_waitcnt lgkmcnt(0)" if opts["CW"] else "s_waitcnt vmcnt(8) lgkmcnt(0)"); o("s_barrier")
stamp()
for k in range(4): o(f"ds_read_b128 {vr(XT+4*k,4)}, v{vT[1]} offset:{QRED+k*4224}")
o("s_waitcnt lgkmcnt(0)")
def red4(b0, n):
    st = n // 2
    while st:
        for k in range(4*st): o(f"v_add_f32 v{b0+k}, v{b0+k}, v{b0+4*st+k}")
        st //= 2
    for k in range(4): o(f"v_mov_b32 v{b0+4+k}, v{b0+k}")
    o("s_nop 0")
    for k in range(4): o(f"v_permlane32_swap_b32 v{b0+4+k}, v{b0+k}")
    o("s_nop 0")
    for k in range(4): o(f"v_add_f32 v{b0+k}, v{b0+k}, v{b0+4+k}")
red4(XT, 4)
for k in range(4): o(f"v_perm_b32 v{XT+k}, v{XT+k}, v{vAL1}, s{44+k}")
o(f"buffer_store_dwordx4 {vr(XT,4)}, v{vT[2]}, {srd(SWS)}, s{sT0} offen sc1")
if opts["KL"] == 3: loadK(SAK)
o("s_barrier")
if opts["KL"] == 4: loadK(SAK)
stamp()
XK, XV = XT, XT + 32
def pre_rest(v0=True):
    if v0: loadV(SAV)
    if opts["D2"]: setoff(None, 0x10000); loadK(SAK, XK); loadV(SAV, XV)
    setoff(None, 0x10000)
o(f"s_cmp_eq_u32 s{sW}, 0"); o("s_cbranch_scc1 L_w0")
o("s_nop 0")
pre_rest()
if opts["CW"]: o(f"s_waitcnt vmcnt({24 if opts['D2'] else 8})")
o("s_barrier"); o("s_branch L_go")
lab("L_w0")
o(f"v_mov_b32 v{vT[3]}, {hex(OOB)}"); o(f"v_mov_b32 v{vT[5]}, s91"); o(f"v_cmp_eq_u32 vcc, 0, v{vLANE}"); o(f"v_mov_b32 v{vT[4]}, 1")
o(f"v_cndmask_b32 v{vT[3]}, v{vT[3]}, v{vT[5]}, vcc")
o(f"s_lshl_b32 s{sT1}, s{sB}, 9"); o(f"s_lshl_b32 s{sT0}, s{sH}, 14"); o(f"s_add_u32 s{sT0}, s{sT0}, s{sT1}"); o(f"s_add_u32 s{sT2}, s{sT0}, 0x1000")
o(f"v_and_b32 v{vT[1]}, 3, v{vLANE}"); o(f"v_lshlrev_b32 v{vT[1]}, 6, v{vT[1]}"); o(f"v_bfe_u32 v{vT[2]}, v{vLANE}, 2, 3"); o(f"v_lshl_add_u32 v{vT[1]}, v{vT[2]}, 1, v{vT[1]}")
def tagchk(b0, first):
    o(f"v_perm_b32 v{vT[8]}, v{b0+1}, v{b0}, s54"); o(f"v_perm_b32 v{vT[9]}, v{b0+3}, v{b0+2}, s55")
    o(f"v_or_b32 v{vT[8]}, v{vT[8]}, v{vT[9]}")
    if first: o(f"v_xor_b32 v{vT[0]}, v{vT[8]}, v{vAL1}")
    else: o(f"v_xor_b32 v{vT[8]}, v{vT[8]}, v{vAL1}"); o(f"v_or_b32 v{vT[0]}, v{vT[0]}, v{vT[8]}")
def qwrite(b0, off):
    o(f"v_cvt_pk_bf16_f32 v{b0}, v{b0}, v{b0+1}"); o(f"v_cvt_pk_bf16_f32 v{b0+1}, v{b0+2}, v{b0+3}")
    o(f"ds_write_b16 v{vT[1]}, v{b0} offset:{off}"); o(f"ds_write_b16_d16_hi v{vT[1]}, v{b0} offset:{off+16}")
    o(f"ds_write_b16 v{vT[1]}, v{b0+1} offset:{off+32}"); o(f"ds_write_b16_d16_hi v{vT[1]}, v{b0+1} offset:{off+48}")
QT = XT + 64
lab("L_pollQ")
o(f"buffer_load_dwordx4 {vr(QT,4)}, v{vT[7]}, {srd(SWS)}, s{sT0} offen sc1"); o(f"buffer_load_dwordx4 {vr(QT+4,4)}, v{vT[7]}, {srd(SWS)}, s{sT2} offen sc1")
o("s_waitcnt vmcnt(0)")
tagchk(QT, True); tagchk(QT+4, False)
o(f"v_cmp_ne_u32 vcc, 0, v{vT[0]}")
spin_tail("L_pollQ", "L_pollQ_done")
for k in range(8): o(f"v_and_b32 v{QT+k}, 0xffffff00, v{QT+k}")
red4(QT, 2); qwrite(QT, QS)
o("s_waitcnt lgkmcnt(0)"); o("s_barrier")
stamp()
o(f"buffer_store_byte v{vT[4]}, v{vT[3]}, {srd(SDBG)}, 0 offen sc1")
loadV(SAV)
lab("L_pollQB")
o(f"s_and_b32 s{sT0}, s{sH}, 0x18"); o(f"s_add_u32 s{sT0}, s{sT0}, 32"); o(f"s_lshl_b32 s{sT0}, s{sT0}, 14"); o(f"s_add_u32 s{sT0}, s{sT0}, s{sT1}")
for v in range(8):
    o(f"s_add_u32 s{sT2}, s{sT0}, 0x1000")
    o(f"buffer_load_dwordx4 {vr(XT+v*8,4)}, v{vT[7]}, {srd(SWS)}, s{sT0} offen sc1"); o(f"buffer_load_dwordx4 {vr(XT+v*8+4,4)}, v{vT[7]}, {srd(SWS)}, s{sT2} offen sc1")
    if v < 7: o(f"s_add_u32 s{sT0}, s{sT0}, 0x4000")
o("s_waitcnt vmcnt(0)")
for v in range(16): tagchk(XT+4*v, v == 0)
o(f"v_cmp_ne_u32 vcc, 0, v{vT[0]}")
spin_tail("L_pollQB", "L_pollQB_done")
for k in range(64): o(f"v_and_b32 v{XT+k}, 0xffffff00, v{XT+k}")
for v in range(8): red4(XT+8*v, 2); qwrite(XT+8*v, QS+256+256*v)
o(f"v_mov_b32 v{vT[0]}, 0"); o(f"v_mov_b32 v{vT[2]}, 8"); o(f"ds_write_b32 v{vT[0]}, v{vT[2]} offset:{CNT+4}")
o("s_waitcnt lgkmcnt(0)")
pre_rest(False)
lab("L_go")
o(f"v_lshlrev_b32 v{vT[8]}, 4, v{vG}")
loadQ(vT[8]); initsm()
stamp()
if opts["D2"]:
    tile(lambda: loadK(SAK), lambda: loadV(SAV), wK=24, wV=24)
    tile(lambda: None, lambda: o("s_nop 7"), wK=24, wV=16, ks=XK, vs=XV)
    setoff(None, 0x10000); o(f"s_mov_b32 s{sCNT}, 2")
else: o(f"s_mov_b32 s{sCNT}, 0"); o(f"v_lshlrev_b32 v{XT+49}, 2, v{vLANE}")
c("---- main loop over A tiles")
lab("L_A")
tile(lambda: sel_load(loadK, SAK, SBK), lambda: sel_load(loadV, SAV, SBV))
o(f"s_cmp_lt_u32 s{sCNT}, {NSTAT-1}"); o("s_cbranch_scc1 L_extra")
o(f"s_cmp_eq_u32 s{sKN}, 1"); o("s_cbranch_scc1 L_B")
lab("L_A2")
o(f"s_cmp_eq_u32 s{sKN}, 2"); o("s_cbranch_scc1 L_last")
lab("L_A3")
decide_dyn(False)
o("s_branch L_A")
c("---- extras in the static phase")
lab("L_extra")
o(f"s_cmp_eq_u32 s{sCNT}, {NSTAT-3}"); o("s_cbranch_scc1 L_E2")
o(f"s_cmp_eq_u32 s{sCNT}, {NSTAT-2}"); o("s_cbranch_scc1 L_E3")
lab("L_Eret")
o(f"s_add_u32 s{sCNT}, s{sCNT}, 1"); o(f"s_add_u32 s{sOFF}, s{sOFF}, 0x10000"); setoff(None, 0); o("s_branch L_A")
lab("L_E2")
c("issue flag load + gate inputs")
GX = XT + 16
o(f"v_lshlrev_b32 v{XT+49}, 2, v{vLANE}")
o(f"buffer_load_dword v{XT+48}, v{XT+49}, {srd(SDBG)}, 0 offen sc1")
o(f"v_lshlrev_b32 v{vT[4]}, 5, v{vLANE}"); o(f"s_lshl_b32 s{sT1}, s{sW}, 11")
o(f"buffer_load_dwordx4 {vr(GX,4)}, v{vT[4]}, {srd(SX)}, s{sT1} offen"); o(f"buffer_load_dwordx4 {vr(GX+4,4)}, v{vT[4]}, {srd(SX)}, s{sT1} offen offset:16")
o(f"buffer_load_dwordx4 {vr(GX+8,4)}, v{vT[4]}, {srd(SGW)}, 0 offen"); o(f"buffer_load_dwordx4 {vr(GX+12,4)}, v{vT[4]}, {srd(SGW)}, 0 offen offset:16")
o("s_branch L_Eret")
lab("L_E3")
o(f"s_mov_b32 s{sT0}, 0x01010101")
lab("L_poll0")
o(f"v_cmp_ne_u32 vcc, s{sT0}, v{XT+48}"); o("s_cbranch_vccz L_poll0_done")
o(f"s_sub_u32 s{sSPIN}, s{sSPIN}, 1"); o("s_cbranch_scc1 L_poll0_done"); o("s_sleep 8")
o(f"buffer_load_dword v{XT+48}, v{XT+49}, {srd(SDBG)}, 0 offen sc1"); o("s_waitcnt vmcnt(0)"); o("s_branch L_poll0")
lab("L_poll0_done")
stamp()
c("gate for batch w: sigmoid(bf16(sum(bf16(x*gw))))")
for i in range(8):
    a, b_ = GX+16+2*i, GX+17+2*i
    o(f"v_lshlrev_b32 v{vT[0]}, 16, v{GX+i}"); o(f"v_lshlrev_b32 v{vT[1]}, 16, v{GX+8+i}"); o(f"v_mul_f32 v{a}, v{vT[0]}, v{vT[1]}")
    o(f"v_and_b32 v{vT[0]}, 0xffff0000, v{GX+i}"); o(f"v_and_b32 v{vT[1]}, 0xffff0000, v{GX+8+i}"); o(f"v_mul_f32 v{b_}, v{vT[0]}, v{vT[1]}")
    rnd2(a, b_, vT[2])
    o(f"v_add_f32 v{a}, v{a}, v{b_}")
    if i: o(f"v_add_f32 v{GX+16}, v{GX+16}, v{a}")
gs = GX + 16
for r in (8, 4, 2, 1):
    o("s_nop 1"); o(f"v_add_f32_dpp v{gs}, v{gs}, v{gs} row_ror:{r} row_mask:0xf bank_mask:0xf")
xmax(gs, vT[0], "v_add_f32")
rnd2(gs, gs+1, vT[2])
o(f"v_mul_f32 v{gs}, s{sLOG2E}, v{gs}"); o(f"v_exp_f32 v{gs}, -v{gs}"); o("s_nop 0"); o(f"v_add_f32 v{gs}, 1.0, v{gs}")
o(f"v_rcp_f32 v{gs}, v{gs}"); o("s_nop 0"); rnd2(gs, gs+1, vT[2])
o(f"v_sub_f32 v{gs+1}, 1.0, v{gs}"); rnd2(gs+1, gs+2, vT[2])
o(f"s_lshl_b32 s{sT0}, s{sW}, 3"); o(f"v_mov_b32 v{vT[0]}, s{sT0}"); o(f"ds_write_b64 v{vT[0]}, {vr(gs,2)} offset:{GATE}")
o(f"s_add_u32 s{sCNT}, s{sCNT}, 1")
o("s_branch L_A3")
c("---- branch B: 2 tiles per wave")
lab("L_B")
stamp()
SV = XT + 64
o(f"s_mov_b32 s{sBD}, 1")
o(f"v_and_b32 v{vT[8]}, 7, v{vC}"); o(f"v_lshlrev_b32 v{vT[8]}, 8, v{vT[8]}"); o(f"v_lshl_add_u32 v{vT[8]}, v{vG}, 4, v{vT[8]}"); o(f"v_add_u32 v{vT[8]}, 256, v{vT[8]}")
for i in range(32): o(f"v_mov_b32 v{SV+i}, v{ACC+i}")
o(f"v_mov_b32 v{SV-2}, v{vM}"); o(f"v_mov_b32 v{SV-1}, v{vL}")
loadQ(vT[8]); initsm()
tile(lambda: (setoff(None, 0x10000), loadK(SBK)), lambda: loadV(SBV))
decide_dyn(True)
tile(lambda: loadK(SAK), lambda: loadV(SAV))
c("B epilogue: last arriver combines across waves and publishes")
xmax(vL, vT[0], "v_add_f32")
o(f"s_lshl_b32 s{sT0}, s{sW}, 6"); o(f"v_lshlrev_b32 v{vT[1]}, 3, v{vC}"); o(f"v_add_u32 v{vT[1]}, s{sT0}, v{vT[1]}")
o("s_mov_b32 exec_lo, 0x00ff00ff"); o("s_mov_b32 exec_hi, 0x00ff00ff"); o("s_nop 1")
o(f"ds_write_b64 v{vT[1]}, {vr(vM,2)} offset:{BML}")
for e in range(8): o(f"ds_write_b128 v{vT[6]}, {vr(ACC+e*4,4)} offset:{BCOMB+e*64}")
o("s_mov_b64 exec, -1"); o("s_waitcnt lgkmcnt(0)")
lds_ctr("addr", CNT+8, sT0)
o(f"s_cmp_lg_u32 s{sT0}, 7"); o("s_cbranch_scc1 L_Bdone")
o(f"v_lshlrev_b32 v{vT[2]}, 3, v{vLANE}"); o(f"v_add_u32 v{vT[1]}, {BCOMB}, v{vT[2]}"); o(f"v_mov_b32 v{vT[3]}, {BML}")
o(f"v_mov_b32 v{vT[4]}, {hex(OOB)}"); o(f"v_cmp_eq_u32 vcc, 0, v{vLANE}"); o("s_nop 1"); o(f"v_cndmask_b32 v{vT[4]}, v{vT[4]}, 0, vcc")
o(f"s_and_b32 s{sT1}, s91, 0xf8"); o(f"s_lshl_b32 s{sT1}, s{sT1}, 3"); o(f"s_and_b32 s{sT2}, s91, 7"); o(f"s_add_u32 s{sT1}, s{sT1}, s{sT2}")
o(f"s_lshl_b32 s{sT0}, s{sT1}, 9"); o(f"s_add_u32 s{sT0}, s{sT0}, {hex(BPO)}"); o(f"s_lshl_b32 s{sT1}, s{sT1}, 4"); o(f"s_add_u32 s{sT1}, s{sT1}, {hex(BPML)}")
o(f"s_mov_b32 s{sT2}, 8")
lab("L_Bc")
combine(vT[1], 4224, vT[3], 64, True)
o(f"buffer_store_dwordx2 {vr(XT,2)}, v{vT[2]}, {srd(SWS)}, s{sT0} offen sc1")
o(f"buffer_store_dwordx2 {vr(vM,2)}, v{vT[4]}, {srd(SWS)}, s{sT1} offen sc1")
o(f"v_add_u32 v{vT[1]}, 528, v{vT[1]}"); o(f"v_add_u32 v{vT[3]}, 8, v{vT[3]}")
o(f"s_add_u32 s{sT0}, s{sT0}, 0x1000"); o(f"s_add_u32 s{sT1}, s{sT1}, 0x80")
o(f"s_sub_u32 s{sT2}, s{sT2}, 1"); o(f"s_cmp_lg_u32 s{sT2}, 0"); o("s_cbranch_scc1 L_Bc")
lab("L_Bdone")
o(f"v_lshlrev_b32 v{vT[8]}, 4, v{vG}")
for i in range(32): o(f"v_mov_b32 v{ACC+i}, v{SV+i}")
o(f"v_mov_b32 v{vM}, v{SV-2}"); o(f"v_mov_b32 v{vL}, v{SV-1}")
loadQ(vT[8])
stamp()
o("s_branch L_A2")
lab("L_last")
def last_nextK():
    o(f"s_lshl_b32 s{sT0}, s{sH}, 7"); o(f"s_and_b32 s{sT1}, s{sW}, 3"); o(f"s_lshl_b32 s{sT1}, s{sT1}, 5"); o(f"s_add_u32 s{sT0}, s{sT0}, s{sT1}")
    o(f"s_lshl_b32 s{sT0}, s{sT0}, 11"); o(f"s_lshl_b32 s{sT1}, s{sB}, 8"); o(f"s_add_u32 s{sT0}, s{sT0}, s{sT1}")
    o(f"v_lshlrev_b32 v{vT[9]}, 14, v{vG}"); o(f"v_lshl_add_u32 v{vT[9]}, v{vC}, 4, v{vT[9]}")
    o(f"s_lshl_b32 s{sT2}, s91, 3"); o(f"s_add_u32 s{sT2}, s{sT2}, s{sW}"); o(f"s_lshl_b32 s{sT3}, s{sT2}, 4"); o(f"s_add_u32 s{sT3}, s{sT3}, {hex(BPML)}")
    o(f"s_lshl_b32 s{sT2}, s{sT2}, 9"); o(f"s_add_u32 s{sT2}, s{sT2}, {hex(BPO)}")
    o(f"v_lshlrev_b32 v{XT+44}, 3, v{vLANE}"); o(f"v_mov_b32 v{XT+45}, 0")
    o(f"buffer_load_dwordx2 {vr(XT+40,2)}, v{XT+44}, {srd(SWS)}, s{sT2} offen sc1")
    o(f"buffer_load_dwordx2 {vr(XT+42,2)}, v{XT+45}, {srd(SWS)}, s{sT3} offen sc1")
    for i in range(8):
        o(f"buffer_load_dwordx4 {vr(KB+i*4,4)}, v{vT[9]}, {srd(SWO)}, s{sT0} offen offset:{(i&1)*2048} {NT}")
        if i & 1 and i < 7: o(f"s_add_u32 s{sT0}, s{sT0}, 0x1000")
tile(last_nextK, lambda: None, wK=8, wV=8, prio=False)
stamp()
if TS:
    o(f"s_lshl_b32 s{sT0}, s91, 3"); o(f"s_add_u32 s{sT0}, s{sT0}, s{sW}"); o(f"s_lshl_b32 s{sT0}, s{sT0}, 2"); o(f"s_add_u32 s{sT0}, s{sT0}, {hex(TSO+0x4000)}")
    o(f"v_mov_b32 v{vT[0]}, s2"); o(f"v_mov_b32 v{vT[1]}, 0"); o(f"buffer_store_dword v{vT[0]}, v{vT[1]}, {srd(SWS)}, s{sT0} offen")
c("---- tail: combine A (wave 0) and B splits (wave 1)")
lab("L_pollB")
o(f"v_cmp_eq_u32 vcc, -1, v{XT+40}"); o(f"v_cmp_eq_u32 s[2:3], -1, v{XT+41}"); o("s_or_b64 vcc, vcc, s[2:3]")
o(f"v_cmp_eq_u32 s[2:3], -1, v{XT+42}"); o("s_or_b64 vcc, vcc, s[2:3]"); o(f"v_cmp_eq_u32 s[2:3], -1, v{XT+43}"); o("s_or_b64 vcc, vcc, s[2:3]")
o("s_cbranch_scc0 L_pollB_done")
o(f"s_sub_u32 s{sSPIN}, s{sSPIN}, 1"); o("s_cbranch_scc1 L_pollB_done"); o("s_sleep 1")
o(f"buffer_load_dwordx2 {vr(XT+40,2)}, v{XT+44}, {srd(SWS)}, s{sT2} offen sc1")
o(f"buffer_load_dwordx2 {vr(XT+42,2)}, v{XT+45}, {srd(SWS)}, s{sT3} offen sc1")
o("s_waitcnt vmcnt(0)"); o("s_branch L_pollB")
lab("L_pollB_done")
xmax(vL, vT[0], "v_add_f32")
o(f"s_lshl_b32 s{sT0}, s{sW}, 9"); o(f"v_lshl_add_u32 v{vT[1]}, v{vG}, 4, s{sT0}"); o(f"v_add_u32 v{vT[2]}, s{sT0}, v{XT+44}")
o(f"s_lshl_b32 s{sT0}, s{sW}, 3"); o(f"v_mov_b32 v{vT[3]}, s{sT0}")
o(f"ds_write_b64 v{vT[2]}, {vr(XT+40,2)} offset:{ACOMB+B2D}"); o(f"ds_write_b64 v{vT[3]}, {vr(XT+42,2)} offset:{AML+B2D}")
o(f"ds_write_b64 v{vT[3]}, {vr(vM,2)} offset:{AML}")
o("s_mov_b32 exec_lo, 0x00010001"); o("s_mov_b32 exec_hi, 0x00010001"); o("s_nop 1")
for e in range(8): o(f"ds_write_b128 v{vT[1]}, {vr(ACC+e*4,4)} offset:{ACOMB+e*64}")
o("s_mov_b64 exec, -1")
o(f"v_and_b32 v{vT[4]}, 7, v{vC}"); o(f"s_lshr_b32 s{sT1}, s{sW}, 2"); o(f"s_lshl_b32 s{sT0}, s{sT1}, 2"); o(f"v_lshl_add_u32 v{vT[5]}, v{vT[4]}, 3, s{sT0}")
o("s_waitcnt lgkmcnt(0)")
DRY = opts["DRY"]
if DRY:
    c("wave 1 walks the tail code once with no live lanes to pull it into the instruction cache")
    o(f"s_cmp_lg_u32 s{sW}, 1"); o("s_cbranch_scc1 L_real"); o("s_mov_b64 s[58:59], 0"); o("s_mov_b64 exec, 0"); o("s_branch L_tail")
    lab("L_real"); o("s_mov_b64 s[58:59], -1"); o("s_mov_b64 exec, -1")
o("s_barrier")
lab("L_tail")
o(f"ds_read_b32 v{vAL1}, v{vT[5]} offset:{GATE}")
o(f"s_cmp_gt_u32 s{sW}, 1"); o("s_cbranch_scc1 L_nocomb")
o(f"s_mul_i32 s{sT0}, s{sW}, {B2D}"); o(f"s_add_u32 s{sT2}, s{sT0}, {AML}"); o(f"s_add_u32 s{sT0}, s{sT0}, {ACOMB}")
o(f"v_and_b32 v{vT[1]}, 3, v{vLANE}"); o(f"v_lshlrev_b32 v{vT[1]}, 7, v{vT[1]}"); o(f"v_lshrrev_b32 v{vT[2]}, 2, v{vLANE}"); o(f"v_lshl_add_u32 v{vT[1]}, v{vT[2]}, 2, v{vT[1]}")
o(f"v_add_u32 v{vT[1]}, s{sT0}, v{vT[1]}"); o(f"v_mov_b32 v{vT[3]}, s{sT2}")
combine(vT[1], 512, vT[3], 8, False)
o(f"v_rcp_f32 v{vL}, v{vL}"); o("s_nop 0"); o(f"v_mul_f32 v{XT}, v{XT}, v{vL}"); o(f"v_mul_f32 v{XT+1}, v{XT+1}, v{vL}")
o(f"v_cvt_pk_bf16_f32 v{XT}, v{XT}, v{XT+1}")
o(f"s_lshl_b32 s{sT0}, s{sH}, 1"); o(f"s_add_u32 s{sT0}, s{sT0}, s{sW}"); o(f"s_lshl_b32 s{sT0}, s{sT0}, 3"); o(f"s_add_u32 s{sT0}, s{sT0}, s{sB}"); o(f"s_lshl_b32 s{sT0}, s{sT0}, 8"); o(f"s_add_u32 s{sT0}, s{sT0}, {hex(OI)}")
o(f"v_lshlrev_b32 v{vT[2]}, 2, v{vLANE}")
o(f"buffer_store_dword v{XT}, v{vT[2]}, {srd(SWS)}, s{sT0} offen sc1")
lab("L_nocomb")
stamp()
c("poll o operand: OI[(h*2+mat)*8 + (c&7)]*256 + (w&3)*64 + g*16")
o(f"s_lshr_b32 s{sT1}, s{sW}, 2"); o(f"s_lshl_b32 s{sT0}, s{sH}, 1"); o(f"s_add_u32 s{sT0}, s{sT0}, s{sT1}"); o(f"s_lshl_b32 s{sT0}, s{sT0}, 11")
o(f"s_and_b32 s{sT1}, s{sW}, 3"); o(f"s_lshl_b32 s{sT1}, s{sT1}, 6"); o(f"s_add_u32 s{sT0}, s{sT0}, s{sT1}"); o(f"s_add_u32 s{sT0}, s{sT0}, {hex(OI)}")
o(f"v_lshlrev_b32 v{vT[4]}, 8, v{vT[4]}"); o(f"v_lshl_add_u32 v{vT[4]}, v{vG}, 4, v{vT[4]}")
lab("L_pollO")
o(f"buffer_load_dwordx4 {vr(P0,4)}, v{vT[4]}, {srd(SWS)}, s{sT0} offen sc1"); o("s_waitcnt vmcnt(0)")
o(f"v_max3_u32 v{vT[0]}, v{P0}, v{P0+1}, v{P0+2}"); o(f"v_max_u32 v{vT[0]}, v{vT[0]}, v{P0+3}"); o(f"v_cmp_eq_u32 vcc, -1, v{vT[0]}")
spin_tail("L_pollO", "L_pollO_done")
stamp()
o("s_waitcnt lgkmcnt(0)"); o(f"v_mov_b32 v{vAL}, v{vAL1}")
pv(KB, P0, first=True)
o("s_nop 7")
for i in range(16): o(f"v_pk_mul_f32 {vr(ACC+2*i,2)}, {vr(ACC+2*i,2)}, {vr(vAL,2)} op_sel_hi:[1,0]")
if DRY: o("s_and_b32 exec_lo, s58, 0x00ff00ff"); o("s_and_b32 exec_hi, s58, 0x00ff00ff"); o("s_nop 1")
else: o("s_mov_b32 exec_lo, 0x00ff00ff"); o("s_mov_b32 exec_hi, 0x00ff00ff"); o("s_nop 1")
for e in range(8): o(f"ds_write_b128 v{vT[6]}, {vr(ACC+e*4,4)} offset:{ORED+e*64}")
o("s_mov_b64 exec, s[58:59]" if DRY else "s_mov_b64 exec, -1")
o(f"s_mul_i32 s{sT0}, s{sW}, 528"); o(f"s_add_u32 s{sT0}, s{sT0}, {ORED}")
o(f"v_and_b32 v{vT[1]}, 3, v{vLANE}"); o(f"v_lshlrev_b32 v{vT[1]}, 7, v{vT[1]}"); o(f"v_lshrrev_b32 v{vT[2]}, 2, v{vLANE}"); o(f"v_lshl_add_u32 v{vT[1]}, v{vT[2]}, 2, v{vT[1]}")
o(f"v_add_u32 v{vT[1]}, s{sT0}, v{vT[1]}")
for w in range(1, 8): o(f"v_add_u32 v{XT+16+w}, {w*4224}, v{vT[1]}")
o("s_waitcnt lgkmcnt(0)")
if DRY: o("s_cmp_eq_u32 s58, 0"); o("s_cbranch_scc1 L_nb2")
o("s_barrier")
lab("L_nb2")
for w in range(8): o(f"ds_read2_b32 {vr(XT+2*w,2)}, v{vT[1] if w==0 else XT+16+w} offset0:0 offset1:16")
o(f"s_lshl_b32 s{sT0}, s91, 3"); o(f"s_add_u32 s{sT0}, s{sT0}, s{sW}"); o(f"s_lshl_b32 s{sT0}, s{sT0}, 9"); o(f"s_add_u32 s{sT0}, s{sT0}, {hex(PI)}")
o("s_waitcnt lgkmcnt(0)")
for st in (8, 4, 2):
    for k in range(st): o(f"v_add_f32 v{XT+k}, v{XT+k}, v{XT+st+k}")
o(f"buffer_store_dwordx2 {vr(XT,2)}, v{XT+44}, {srd(SWS)}, s{sT0} offen sc1")
if DRY: o(f"s_and_b32 s{sT0}, s{sW}, s58"); o("s_cbranch_scc1 L_end")
else: o(f"s_cmp_lg_u32 s{sW}, 0"); o("s_cbranch_scc1 L_end")
stamp()
c("final reduce: PI[(b*32+h')*8 + (h>>2)]*512 + (h&3)*128 + (l&7)*16, h' = (l>>3)+8k")
o(f"s_lshl_b32 s{sT0}, s{sB}, 17"); o(f"s_lshl_b32 s{sT1}, s{sH}, 7"); o(f"s_add_u32 s{sT0}, s{sT0}, s{sT1}"); o(f"s_add_u32 s{sT0}, s{sT0}, {hex(PI)}")
o(f"s_add_u32 s{sT1}, s{sT0}, 0x8000"); o(f"s_add_u32 s{sT2}, s{sT0}, 0x10000"); o(f"s_add_u32 s{sT3}, s{sT0}, 0x18000")
o(f"v_lshrrev_b32 v{vT[1]}, 3, v{vLANE}"); o(f"v_lshlrev_b32 v{vT[1]}, 12, v{vT[1]}"); o(f"v_and_b32 v{vT[2]}, 7, v{vLANE}"); o(f"v_lshl_add_u32 v{vT[1]}, v{vT[2]}, 4, v{vT[1]}")
lab("L_pollP")
for k, sr in enumerate((sT0, sT1, sT2, sT3)): o(f"buffer_load_dwordx4 {vr(XT+4*k,4)}, v{vT[1]}, {srd(SWS)}, s{sr} offen sc1")
o("s_waitcnt vmcnt(0)")
o(f"v_max3_u32 v{vT[0]}, v{XT}, v{XT+1}, v{XT+2}")
for k in range(3, 15, 2): o(f"v_max3_u32 v{vT[0]}, v{vT[0]}, v{XT+k}, v{XT+k+1}")
o(f"v_max_u32 v{vT[0]}, v{vT[0]}, v{XT+15}"); o(f"v_cmp_eq_u32 vcc, -1, v{vT[0]}")
spin_tail("L_pollP", "L_pollP_done")
for st in (8, 4):
    for k in range(st): o(f"v_add_f32 v{XT+k}, v{XT+k}, v{XT+st+k}")
o("s_nop 1")
for k in range(4): o(f"v_add_f32_dpp v{XT+k}, v{XT+k}, v{XT+k} row_ror:8 row_mask:0xf bank_mask:0xf")
for sw in ("v_permlane32_swap_b32", "v_permlane16_swap_b32"):
    for k in range(4): o(f"v_mov_b32 v{XT+4+k}, v{XT+k}")
    o("s_nop 0")
    for k in range(4): o(f"{sw} v{XT+4+k}, v{XT+k}")
    o("s_nop 0")
    for k in range(4): o(f"v_add_f32 v{XT+k}, v{XT+k}, v{XT+4+k}")
o(f"v_cvt_pk_bf16_f32 v{XT}, v{XT}, v{XT+1}"); o(f"v_cvt_pk_bf16_f32 v{XT+1}, v{XT+2}, v{XT+3}")
o(f"s_lshr_b32 s{sT0}, s{sH}, 2"); o(f"s_lshl_b32 s{sT0}, s{sT0}, 11"); o(f"s_lshl_b32 s{sT1}, s{sB}, 8"); o(f"s_add_u32 s{sT0}, s{sT0}, s{sT1}")
o(f"s_and_b32 s{sT1}, s{sH}, 3"); o(f"s_lshl_b32 s{sT1}, s{sT1}, 6"); o(f"s_add_u32 s{sT0}, s{sT0}, s{sT1}")
o(f"v_mov_b32 v{vT[3]}, {hex(OOB)}"); o(f"v_cmp_gt_u32 vcc, 8, v{vLANE}"); o("s_nop 1"); o(f"v_cndmask_b32 v{vT[3]}, v{vT[3]}, v{XT+44}, vcc")
o(f"buffer_store_dwordx2 {vr(XT,2)}, v{vT[3]}, {srd(SOUT)}, s{sT0} offen")
if DRY: o("s_cmp_eq_u32 s58, 0"); o("s_cbranch_scc1 L_real")
o("s_cmp_lg_u32 s91, 0"); o("s_cbranch_scc1 L_nobump")
o(f"s_add_u32 s{sEP}, s{sEP}, 0x01000193"); o(f"v_mov_b32 v{vT[0]}, s{sEP}"); o(f"v_mov_b32 v{vT[1]}, {hex(EPO)}")
o(f"buffer_store_dword v{vT[0]}, v{vT[1]}, {srd(SWS)}, 0 offen")
lab("L_nobump")
if TS:
    stamp()
    o(f"s_lshl_b32 s{sT0}, s91, 6"); o(f"s_add_u32 s{sT0}, s{sT0}, {hex(TSO)}"); o(f"v_mov_b32 v{vT[1]}, 0")
    o("s_getreg_b32 s2, hwreg(HW_REG_XCC_ID)"); o(f"v_mov_b32 v{vT[0]}, s2")
    o(f"buffer_store_dword v{vT[0]}, v{vT[1]}, {srd(SWS)}, s{sT0} offen offset:60")
    for i in range(nstamp[0]):
        o(f"v_mov_b32 v{vT[0]}, s{TSR[i]}"); o(f"buffer_store_dword v{vT[0]}, v{vT[1]}, {srd(SWS)}, s{sT0} offen offset:{i*4}")
lab("L_end")
hdr = open("cdna_kernels/" + NAME + ".s.ref").read().split("\n")
out = []
for ln in hdr:
    if ln.startswith("; @launch"): out.append(f"; @launch grid=(256,1,1) block=(512,1,1) lds={LDS_BYTES}")
    elif ln.startswith(NAME + "_kernel:"):
        out.append(ln); out += L; break
    else: out.append(ln)
out.append("s_endpgm")
tail = hdr[hdr.index('.section .rodata,"a"'):]
out += [t for t in tail]
open(sys.argv[1], "w").write("\n".join(out) + "\n")
print("lines", len(L), "lds", LDS_BYTES, "stamps", nstamp[0])
```
